```python
import torch

def _softmax(x, axis=-1):
    return torch.softmax(x, dim=axis)
def _gelu(x):
    return torch.nn.functional.gelu(x, approximate="tanh")
def _silu(x):
    return torch.nn.functional.silu(x)
def _sigmoid(x):
    return torch.sigmoid(x)
def _layernorm(x, axis=-1, eps=1e-5):
    m = x.mean(dim=axis, keepdim=True)
    v = x.var(dim=axis, keepdim=True, unbiased=False)
    return (x - m) / torch.sqrt(v + eps)
def _scatter_add(tgt, idx, src, axis=0):
    return tgt.clone().index_add_(axis, idx, src)
def _segment_sum(src, seg, n):
    out = torch.zeros((n,) + src.shape[1:], dtype=src.dtype)
    return out.index_add_(0, seg, src)
def _pad(x, pw):
    flat = tuple(v for pair in reversed(pw) for v in pair)
    return torch.nn.functional.pad(x, flat)

kernel_name = 'parallel_sum__linear_attn_block__dense_activation_gelu__prompt'

def setup_inputs():

    _w = (lambda a: (lambda t: t.to(torch.bfloat16) if t.is_floating_point() else t)(torch.as_tensor(a)))
    def _A_setup():
        B, S, D = 1, 2048, 512
        return {
            "x": _w((lambda *s: torch.randn(*s, dtype=torch.bfloat16) * 0.05)(B, S, D)),
            "wqkv": _w((lambda *s: torch.randn(*s, dtype=torch.bfloat16) * 0.2)(D, 3 * D)),
            "wo": _w((lambda *s: torch.randn(*s, dtype=torch.bfloat16) * 0.05)(D, D)),
        }
    _A_in = _A_setup()

    def _B_setup():
        B, S, D, F = 1, 2048, 512, 1792
        return {
            "x": _w((lambda *s: torch.randn(*s, dtype=torch.bfloat16) * 0.05)(B, S, D)),
            "w1": _w((lambda *s: torch.randn(*s, dtype=torch.bfloat16) * 0.8)(D, F) * (D ** -0.5)),
            "b1": _w((lambda *s: torch.randn(*s, dtype=torch.bfloat16) * 12.8)(F) * 0.01),
            "w2": _w((lambda *s: torch.randn(*s, dtype=torch.bfloat16) * 0.8)(F, D) * (F ** -0.5)),
            "b2": _w((lambda *s: torch.randn(*s, dtype=torch.bfloat16) * 12.8)(D) * 0.01),
        }
    _B_in = _B_setup()

    return {
        "A_x": _A_in["x"],
        "A_wqkv": _A_in["wqkv"],
        "A_wo": _A_in["wo"],
        "B_x": _B_in["x"],
        "B_w1": _B_in["w1"],
        "B_b1": _B_in["b1"],
        "B_w2": _B_in["w2"],
        "B_b2": _B_in["b2"],
    }

def reference(A_x, A_wqkv, A_wo, B_x, B_w1, B_b1, B_w2, B_b2):
    def _A_ref(x, wqkv, wo):
        B, S, D = x.shape
        H = 32; Dh = D // H
        qkv = (lambda x, *d: x.permute(*d))((x @ wqkv).reshape(B, S, 3, H, Dh), 2, 0, 3, 1, 4)
        q, k, v = qkv[0], qkv[1], qkv[2]
        phi = lambda t: torch.where(t > 0, t + 1, torch.exp(t)) + 1e-6
        pq, pk = phi(q), phi(k)
        kv = torch.einsum("bhsd,bhse->bhde", pk, v)
        z = torch.einsum("bhsd->bhd", pk)
        num = torch.einsum("bhqd,bhde->bhqe", pq, kv)
        den = torch.einsum("bhqd,bhd->bhq", pq, z)[..., None] + 1e-6
        o = num / den
        return (lambda x, *d: x.permute(*d))(o, 0, 2, 1, 3).reshape(B, S, D) @ wo

    def _B_ref(x, w1, b1, w2, b2):
        h = torch.einsum("bsd,df->bsf", x, w1) + b1
        h = _gelu(h)
        return torch.einsum("bsf,fd->bsd", h, w2) + b2

    x = A_x
    xn = _layernorm(x, axis=-1)
    return x + _A_ref(xn, A_wqkv, A_wo) + _B_ref(xn, B_w1, B_b1, B_w2, B_b2)
```

```python
import re
TRANS = ("v_exp_f32","v_rcp_f32","v_rsq_f32","v_sqrt_f32","v_log_f32","v_sin_f32","v_cos_f32")
def _regs(tok):
    tok = tok.strip()
    tok = re.sub(r"^(-|\||neg\(|abs\()+", "", tok).rstrip("|)")
    m = re.fullmatch(r"([vsa])(\d+)", tok)
    if m: return {(m.group(1), int(m.group(2)))}
    m = re.fullmatch(r"([vsa])\[(\d+):(\d+)\]", tok)
    if m: return {(m.group(1), i) for i in range(int(m.group(2)), int(m.group(3))+1)}
    if tok in ("vcc","vcc_lo","vcc_hi"): return {("vcc",0)}
    if tok == "m0": return {("m0",0)}
    if tok in ("exec","exec_lo","exec_hi"): return {("exec",0)}
    return set()
class Ins:
    def __init__(s, text):
        s.text = text
        t = text.split(";")[0].strip()
        s.label = t.endswith(":")
        parts = t.split(None, 1)
        s.op = parts[0] if parts else ""
        rest = parts[1] if len(parts) > 1 else ""
        rest = re.sub(r"\s+(op_sel|op_sel_hi|neg_lo|neg_hi):\[[^\]]*\]", "", rest)
        ops = [o.strip() for o in rest.split(",")] if rest else []
        if ops:
            last = ops[-1].split()
            s.mods = last[1:]; ops[-1] = last[0] if last else ""
        else: s.mods = []
        s.ops = ops
        op = s.op
        s.mfma = op.startswith("v_mfma")
        s.valu = op.startswith("v_") and not s.mfma
        s.trans = any(op.startswith(x) for x in TRANS)
        s.salu = op.startswith("s_")
        s.ds = op.startswith("ds_")
        s.vmem = op.startswith("buffer_") or op.startswith("global_")
        s.dma = s.vmem and "lds" in s.mods
        s.dst = set(); s.src = set(); s.srcC = set(); s.srcAB = set(); s.stdata = set()
        R = [_regs(o) for o in ops]
        if s.mfma:
            s.dst = R[0]; s.srcAB = R[1] | R[2]; s.srcC = R[3]; s.src = s.srcAB | s.srcC
            s.passes = 8 if "32x32x16" in op else 4
        elif s.valu:
            s.dst = set(R[0]); s.src = set().union(*R[1:]) if len(R) > 1 else set()
            if op.startswith("v_cmpx"): s.dst |= {("exec",0)}
            if op.startswith(("v_cndmask_b32",)) and len(ops) == 3: s.src |= {("vcc",0)}
            if op.startswith(("v_add_co","v_sub_co","v_addc","v_subb")): s.dst |= R[1]
            if op.startswith(("v_fmac","v_mac","v_dot2c","v_pk_fmac")): s.src |= R[0]
            if op.startswith("v_permlane32_swap") or op.startswith("v_permlane16_swap") or op.startswith("v_swap"):
                s.dst |= R[1]; s.src |= R[0]
        elif s.ds:
            if op.startswith("ds_read") or "rtn" in op or op.startswith("ds_bpermute") or op.startswith("ds_swizzle"):
                s.dst = R[0]; s.src = set().union(*R[1:])
            else:
                s.src = set().union(*R); s.stdata = set().union(*R[1:])
        elif s.vmem:
            if s.dma: s.src = set().union(*R) | {("m0",0)}
            elif "load" in op: s.dst = R[0]; s.src = set().union(*R[1:])
            elif op.startswith("buffer_store") or op.startswith("buffer_atomic"):
                s.src = set().union(*R); s.stdata = R[0]
            elif op.startswith("global_store"):
                s.src = set().union(*R); s.stdata = R[1]
            else: s.src = set().union(*R) if R else set()
        elif s.salu:
            if op.startswith(("s_cmp","s_waitcnt","s_barrier","s_branch","s_cbranch","s_nop","s_setprio","s_sleep","s_endpgm","s_setpc","s_bitcmp")):
                s.src = set().union(*R) if R else set()
            else:
                s.dst = R[0] if R else set(); s.src = set().union(*R[1:]) if len(R) > 1 else set()
                if "saveexec" in op: s.dst |= {("exec",0)}
        s.ws = 1
        if op == "s_nop": s.ws = int(ops[0]) + 1
        if s.label or op == "" or op.startswith("."): s.ws = 0
def isv(S): return {r for r in S if r[0] in "va" and r[0] != "vcc"}
def iss(S): return {r for r in S if r[0] in ("s","vcc")}
def need(p, c):
    n = 0
    if p.valu:
        vd = isv(p.dst); sd = iss(p.dst)
        if c.mfma and vd & c.src: n = max(n, 2)
        if p.op.startswith("v_dot") and vd & (c.src | c.dst) and not (c.op == p.op and c.dst == p.dst): n = max(n, 3)
        if p.trans and (c.valu or c.mfma or c.ds or c.vmem) and not c.trans and vd & c.src: n = max(n, 1)
        if p.trans and c.trans and vd & c.src: n = max(n, 1)
        if c.valu and c.op.startswith(("v_readfirstlane","v_readlane")) and vd & c.src: n = max(n, 1)
        if c.valu and c.op.startswith("v_permlane") and vd & c.src: n = max(n, 2)
        if c.valu and any(m.startswith(("quad_perm","row_","wave_","dpp")) for m in c.mods) and vd & c.src: n = max(n, 2)
        if c.valu and sd & c.src: n = max(n, 2)
        if c.valu and c.op.startswith(("v_readlane","v_writelane")) and sd & c.src: n = max(n, 4)
        if c.vmem and sd & c.src: n = max(n, 5)
        if c.salu and sd & c.src: n = max(n, 1)
        if ("exec",0) in p.dst and c.mfma: n = max(n, 4)
        if ("exec",0) in p.dst and c.valu: n = max(n, 5)
    if p.mfma:
        big = p.passes == 8
        if (c.valu or c.ds or c.vmem) and p.dst & (c.src | c.dst): n = max(n, 12 if big else 8)
        if c.mfma:
            if p.dst & c.srcAB: n = max(n, 12 if big else 8)
            if p.dst & c.srcC and p.dst != c.srcC: n = max(n, 10 if big else 6)
            if p.dst & c.dst and not (p.dst & c.srcC): n = max(n, 10 if big else 6)
        if c.valu and p.srcC & c.dst: n = max(n, 7 if big else 3)
    if p.salu:
        if ("m0",0) in p.dst and ("m0",0) in c.src and (c.vmem or c.ds): n = max(n, 1)
        if ("exec",0) in p.dst and c.mfma: n = max(n, 4)
    if (p.vmem or p.ds) and len(p.stdata) > 2 and (c.valu or c.mfma) and p.stdata & c.dst: n = max(n, 2)
    return n
class Asm:
    def __init__(s): s.lines = []
    def __call__(s, text):
        for l in text.split("\n"):
            l = l.strip()
            if l: s.lines.append(l)
    def fence(s): s.lines.append("s_nop 7"); s.lines.append("s_nop 4")
    def finish(s):
        out = []; hist = []; nn = 0
        for l in s.lines:
            c = Ins(l)
            if c.label or c.op.startswith(("s_branch","s_endpgm","s_setpc")):
                out.append(l)
                if not c.label: hist = []
                continue
            d = 0; req = 0
            for p in reversed(hist):
                if d >= 12: break
                req = max(req, need(p, c) - d)
                d += p.ws
            while req > 0:
                k = min(req, 8); nop = Ins(f"s_nop {k-1}"); out.append(nop.text); hist.append(nop); req -= k; nn += 1
            out.append(l); hist.append(c)
            hist = hist[-16:]
        s.nops = nn
        return "\n".join(("    " + x if not x.endswith(":") else x) for x in out) + "\n"
```

```python
import sys, copy, struct
sys.path.insert(0, "dev")
from asmb import Asm
KN = "parallel_sum__linear_attn_block__dense_activation_gelu__prompt"
def f2u(x): return "0x%08x" % struct.unpack("<I", struct.pack("<f", x))[0]
LOG2E = 1.4426950408889634; LN2 = 0.6931471805599453
GC0 = -2*0.7978845608028654*LOG2E; GC1 = GC0*0.044715
WS_HF = 0; HF_RT = 144*1024
WS_KVP = 10 << 20
WS_KVF = 14 << 20
WS_FLG = (14 << 20) + (64 << 10)
WS_SIZE = 15 << 20
SLOT = 8192; NSLOT = 19; SCR = 19*SLOT
SC_STAT = SCR; SC_RS = SCR + 4096; SC_CS = SCR + 4608
SX, SQ, S1, SWS, SW2, SWO, SOUT, SB1, SB2, SDBG = 4, 8, 12, 16, 20, 24, 28, 32, 36, 40
sW, sR, sC, sI, sT = 44, 45, 46, 47, 48
sW1K, sW2K, sXO, sWO_, sWO2, sHF, sKVP, sT0, sT1, sT2 = 49, 50, 51, 52, 53, 54, 55, 56, 57, 58
sRB, sN, sA0, sB0 = 59, 60, 61, 62
def srd(n): return f"s[{n}:{n+3}]"
def vr(a, n=4): return f"v[{a}:{a+n-1}]"
vL, vX0, vX1, vWd, vHd, vL16 = 1, 2, 3, 4, 5, 6
vXA = 8
vWa, vWb, vWc = 12, 13, 14
vKa, vKb, vKc = 15, 16, 17
vHa, vHc = 18, 19
vS, vQ = 20, 21
vC0, vC1, vIRS, vRS, vRL = 22, 23, 24, 25, 26
vB1 = 27
vCSa, vCSr = 30, 31
vXE = 32
vSEL = 36
vCS0, vCS1 = 40, 44
vT = 48
vF = 64
ACC = [80, 96, 112]
vXF = 128
class Path:
    def __init__(s, a): s.a = a; s.vm = []; s.lg = []; s.win = {}
    def fork(s):
        p = Path(s.a); p.vm = list(s.vm); p.lg = list(s.lg); p.win = dict(s.win); return p
    def __call__(s, t): s.a(t)
    def vmem(s, t, tag=None): s.a(t); s.vm.append(tag)
    def lds(s, t, tag=None): s.a(t); s.lg.append(tag)
    def _cnt(s, q, tag):
        idx = [k for k, x in enumerate(q) if x == tag]
        if not idx: return None
        return len(q) - 1 - idx[-1]
    def wait_vm(s, tag):
        n = s._cnt(s.vm, tag)
        if n is None: return
        n = min(n, 63); s.a(f"s_waitcnt vmcnt({n})"); s.vm = s.vm[len(s.vm)-n:] if n else []
    def wait_lg(s, tag):
        n = s._cnt(s.lg, tag)
        if n is None: return
        n = min(n, 15); s.a(f"s_waitcnt lgkmcnt({n})"); s.lg = s.lg[len(s.lg)-n:] if n else []
    def wait_lg0(s):
        if s.lg: s.a("s_waitcnt lgkmcnt(0)"); s.lg = []
    def wait_vm0(s):
        s.a("s_waitcnt vmcnt(0)"); s.vm = []
    def la(s, reg, off):
        w = off >> 16; cur = s.win.get(reg, 0)
        if w != cur:
            s.a(f"v_add_u32 v{reg}, {((w-cur) << 16) & 0xffffffff:#x}, v{reg}"); s.win[reg] = w
        return f"v{reg}", off & 0xffff
    def tr(s, dst, reg, off, tag):
        r, o = s.la(reg, off); s.lds(f"ds_read_b64_tr_b16 {vr(dst,2)}, {r} offset:{o}", tag)
    def rd128(s, dst, reg, off, tag):
        r, o = s.la(reg, off); s.lds(f"ds_read_b128 {vr(dst)}, {r} offset:{o}", tag)
class Alloc:
    def __init__(s): s.free = [True]*NSLOT; s.pos = {}
    def get(s, name, n, align=1):
        for p in range(0, NSLOT-n+1):
            if p % align == 0 and all(s.free[p:p+n]):
                for q in range(p, p+n): s.free[q] = False
                s.pos[name] = (p, n); return p
        return None
    def rel(s, name):
        p, n = s.pos[name]
        for q in range(p, p+n): s.free[q] = True
    def base(s, name): return s.pos[name][0]*SLOT
def mfma32(d, a, b, c): return f"v_mfma_f32_32x32x16_bf16 {vr(d,16)}, {vr(a)}, {vr(b)}, {c if c == 0 else vr(c,16)}"
def mfma16(d, a, b, c): return f"v_mfma_f32_16x16x32_bf16 {vr(d,4)}, {vr(a)}, {vr(b)}, {c if c == 0 else vr(c,4)}"

class Gen:
    def __init__(g, fused=False):
        g.a = Asm(); g.fused = fused; g.sc = " sc1" if fused else ""
    def prologue(g, nwg):
        a = g.a
        a(f"s_cmp_ge_u32 s2, {nwg}\ns_cbranch_scc1 L_exit")
        a("s_load_dwordx16 s[64:79], s[0:1], 0\ns_load_dwordx4 s[80:83], s[0:1], 64\ns_load_dwordx2 s[84:85], s[0:1], 80")
        a(f"v_lshrrev_b32 v2, 6, v0\nv_and_b32 v{vL}, 63, v0\nv_readfirstlane_b32 s{sW}, v2")
        a(f"s_and_b32 s{sR}, s{sW}, 3\ns_lshr_b32 s{sC}, s{sW}, 2\ns_lshl_b32 s{sW1K}, s{sW}, 10\ns_lshl_b32 s{sW2K}, s{sW}, 11")
        a(f"s_and_b32 s{sT0}, s2, 7\ns_lshr_b32 s{sT1}, s2, 3")
        a(f"s_lshr_b32 s{sI}, s{sT1}, 4\ns_lshl_b32 s{sT2}, s{sT0}, 1\ns_add_u32 s{sI}, s{sI}, s{sT2}")
        a(f"s_and_b32 s{sT}, s{sT1}, 15")
        a(f"s_lshr_b32 s{sRB}, s{sT1}, 3\ns_lshl_b32 s{sT2}, s{sT0}, 2\ns_add_u32 s{sRB}, s{sRB}, s{sT2}\ns_and_b32 s{sN}, s{sT1}, 7")
        a(f"v_lshlrev_b32 v{vL16}, 4, v{vL}")
        a("s_waitcnt lgkmcnt(0)")
        for d, p, n in ((SX,64,2048*1024),(SQ,66,512*3072),(SWO,68,512*1024),(S1,72,512*3584),(SB1,74,3584),(SW2,76,1792*1024),
                        (SB2,78,1024),(SOUT,80,2048*1024),(SDBG,82,256),(SWS,84,WS_SIZE)):
            a(f"s_mov_b32 s{d}, s{p}\ns_mov_b32 s{d+1}, s{p+1}\ns_mov_b32 s{d+2}, {n}\ns_mov_b32 s{d+3}, 0x00020000")
    def wdma_voff(g, dst, stride, t0, t1):
        a = g.a
        a(f"v_lshrrev_b32 v{t0}, 3, v{vL}\nv_mul_u32_u24 v{dst}, {stride}, v{t0}")
        a(f"v_lshrrev_b32 v{t0}, 2, v{vL}\nv_and_b32 v{t0}, 4, v{t0}\nv_and_b32 v{t1}, 7, v{vL}\nv_xor_b32 v{t0}, v{t0}, v{t1}")
        a(f"v_lshl_add_u32 v{dst}, v{t0}, 4, v{dst}")
    def tr_inrow(g, dst, t0, t1):
        a = g.a
        a(f"v_and_b32 v{dst}, 16, v{vL}\nv_lshlrev_b32 v{dst}, 1, v{dst}\nv_and_b32 v{t0}, 3, v{vL}\nv_lshl_add_u32 v{dst}, v{t0}, 3, v{dst}")
        a(f"v_and_b32 v{t0}, 8, v{vL}\nv_lshl_add_u32 v{dst}, v{t0}, 3, v{dst}")
        a(f"v_bfe_u32 v{t0}, v{vL}, 2, 2\nv_lshl_add_u32 v{dst}, v{t0}, 7, v{dst}")
    def issue(g, p, al, u):
        k = u[0]; b = al.base(u)
        if k == "X":
            p(f"s_add_u32 m0, s{sW2K}, {b}\ns_add_u32 s{sT0}, s{sXO}, {u[1]*128}")
            p.vmem(f"buffer_load_dwordx4 v{vX0}, {srd(SX)}, s{sT0} offen lds", u)
            p.vmem(f"buffer_load_dwordx4 v{vX1}, {srd(SX)}, s{sT0} offen offset:1024 lds", u)
        elif k == "W":
            p(f"s_add_u32 m0, s{sW1K}, {b}\ns_add_u32 s{sT0}, s{sWO_}, {u[2]*64*3584 + u[1]*128}")
            p.vmem(f"buffer_load_dwordx4 v{vWd}, {srd(S1)}, s{sT0} offen lds", u)
        elif k == "KV":
            p(f"s_add_u32 m0, s{sW2K}, {b}\ns_add_u32 s{sT0}, s{sWO_}, {u[1]*64*3072 + 1024}")
            p.vmem(f"buffer_load_dwordx4 v{vWd}, {srd(SQ)}, s{sT0} offen lds", u)
            p.vmem(f"buffer_load_dwordx4 v{vWd}, {srd(SQ)}, s{sT0} offen offset:1024 lds", u)
        elif k == "Q":
            p(f"s_add_u32 m0, s{sW1K}, {b}\ns_add_u32 s{sT0}, s{sWO_}, {u[1]*64*3072}")
            p.vmem(f"buffer_load_dwordx4 v{vWd}, {srd(SQ)}, s{sT0} offen lds", u)
        elif k == "Hh":
            p(f"s_add_u32 m0, s{sW1K}, {b}\ns_add_u32 s{sT0}, s{sWO2}, {u[1]*128*3584}")
            p.vmem(f"buffer_load_dwordx4 v{vHd}, {srd(S1)}, s{sT0} offen lds", u)
        elif k == "B":
            g.issue_B(p, u[1], b)
    USZ = {"X":2, "W":1, "KV":2, "Q":1, "Hh":1, "B":2}
    def plan(g, al, queue):
        out = []
        while queue:
            u = queue[0]
            if al.get(u, g.USZ[u[0]], 2 if u[0] == "B" else 1) is None: break
            out.append(queue.pop(0))
        return out
    def p1_setup(g):
        a = g.a; t0, t1 = vT, vT+1
        a(f"v_lshrrev_b32 v{t0}, 4, v{vL}\nv_and_b32 v{t1}, 7, v{vL}\nv_xor_b32 v{t0}, v{t0}, v{t1}\nv_lshlrev_b32 v{t0}, 4, v{t0}")
        a(f"v_lshrrev_b32 v{t1}, 3, v{vL}\nv_lshl_add_u32 v{vX0}, v{t1}, 10, v{t0}")
        a(f"v_xor_b32 v{vX1}, 64, v{vX0}\nv_add_u32 v{vX1}, 7168, v{vX1}")
        a(f"s_lshl_b32 s{sXO}, s{sI}, 17\ns_lshl_b32 s{sT0}, s{sW}, 14\ns_add_u32 s{sXO}, s{sXO}, s{sT0}")
    def p1_setup2(g, atype):
        a = g.a; t0, t1, t2 = vT, vT+1, vT+2
        a(f"v_and_b32 v{t0}, 31, v{vL}\nv_lshlrev_b32 v{t1}, 7, v{t0}")
        a(f"v_bfe_u32 v{t0}, v{vL}, 1, 3\nv_lshrrev_b32 v{t2}, 5, v{vL}\nv_xor_b32 v{t0}, v{t0}, v{t2}")
        a(f"v_lshl_add_u32 v{t1}, v{t0}, 4, v{t1}\ns_lshl_b32 s{sT0}, s{sR}, 12\nv_add_u32 v{t1}, s{sT0}, v{t1}")
        a(f"s_lshl_b32 s{sT0}, s{sC}, 6\nv_xor_b32 v{vXA}, s{sT0}, v{t1}")
        for kk in range(1, 4): a(f"v_xor_b32 v{vXA+kk}, {kk*32}, v{vXA}")
        g.tr_inrow(t1, t0, t2)
        a(f"v_xor_b32 v{t1}, s{sT0}, v{t1}")
        a(f"v_lshrrev_b32 v{t2}, 5, v{vL}")
        for (ra, rb, rc, ps) in ((vWa, vWb, vWc, 1024),) + (((vKa, vKb, vKc, 2048),) if atype else ()):
            sh = 10 if ps == 1024 else 11
            a(f"v_lshl_add_u32 v{t0}, v{t2}, {sh}, v{t1}")
            a(f"s_lshl_b32 s{sT1}, s{sC}, {sh+2}\nv_add_u32 v{ra}, s{sT1}, v{t0}\nv_xor_b32 v{rb}, {4*ps}, v{ra}")
            a(f"s_lshl_b32 s{sT1}, s{sR}, {sh+1}\nv_add_u32 v{rc}, s{sT1}, v{t0}")
        if atype:
            a(f"v_and_b32 v{vHa}, 16, v{vL}\nv_lshlrev_b32 v{vHa}, 1, v{vHa}\nv_and_b32 v{t0}, 3, v{vL}\nv_lshl_add_u32 v{vHa}, v{t0}, 3, v{vHa}")
            a(f"v_bfe_u32 v{t0}, v{vL}, 2, 2\nv_lshl_add_u32 v{vHa}, v{t0}, 6, v{vHa}\nv_lshl_add_u32 v{vHa}, v{t2}, 9, v{vHa}")
            a(f"s_lshl_b32 s{sT1}, s{sR}, 10\nv_add_u32 v{vHc}, s{sT1}, v{vHa}")
        a(f"v_and_b32 v{t0}, 31, v{vL}\nv_cmp_eq_u32 vcc, 0, v{t0}\nv_cmp_eq_u32 s[{sT0}:{sT0+1}], 20, v{t0}\ns_or_b64 vcc, vcc, s[{sT0}:{sT0+1}]")
        a(f"v_mov_b32 v{t1}, 0x3f803f80\nv_cndmask_b32 v{vSEL}, 0, v{t1}, vcc")
        for k in range(1, 4): a(f"v_mov_b32 v{vSEL+k}, v{vSEL}")
        a(f"v_lshlrev_b32 v{vCSr}, 4, v{t0}\ns_lshl_b32 s{sT0}, s{sC}, 9\ns_add_u32 s{sT0}, s{sT0}, {SC_CS}\nv_add_u32 v{vCSr}, s{sT0}, v{vCSr}")
        a(f"s_lshl_b32 s{sT0}, s{sR}, 2\nv_add_u32 v{vCSa}, s{sT0}, v{vCSr}")
        a(f"v_mov_b32 v{vS}, 0\nv_mov_b32 v{vQ}, 0")
    def stats_ops(g, regs):
        ops = []
        for k, r in enumerate(regs):
            lo, hi = vT + 2*(k & 3), vT + 2*(k & 3) + 1
            ops += [f"v_lshlrev_b32 v{lo}, 16, v{r}", f"v_and_b32 v{hi}, 0xffff0000, v{r}",
                    f"v_add_f32 v{vS}, v{vS}, v{lo}", f"v_fmac_f32 v{vQ}, v{lo}, v{lo}",
                    f"v_add_f32 v{vS}, v{vS}, v{hi}", f"v_fmac_f32 v{vQ}, v{hi}, v{hi}"]
        return ops
    def cs_write(g, p, acc, tileidx):
        p(f"s_mov_b32 exec_hi, 0")
        p.lds(f"ds_write_b32 v{vCSa}, v{acc} offset:{int(tileidx*1024)}", "csw")
        p(f"s_mov_b32 exec_hi, -1")
    def i0(g, p, al, queue, atype):
        nt = 2 if atype else 1
        ra, rb, rc, ps = (vKa, vKb, vKc, 2048) if atype else (vWa, vWb, vWc, 1024)
        for kc in range(8):
            wu = ("KV", kc) if atype else ("W", 0, kc)
            p.wait_lg0()
            p.wait_vm(("X", kc)); p.wait_vm(wu)
            p("s_barrier")
            xb, wb = al.base(("X", kc)), al.base(wu)
            def rdw(kk, t):
                f = vF + 4*((kk*nt + t) & 3)
                for n in range(2):
                    p.tr(f + 2*n, ra if kk < 2 else rb, wb + (kk & 1)*2*ps + n*512 + t*1024, ("w", kk, t))
            p.rd128(vXF + 16*kc, vXA, xb, ("x", 0))
            for t in range(nt): rdw(0, t)
            p.rd128(vXF + 16*kc + 4, vXA+1, xb, ("x", 1))
            for t in range(nt): rdw(1, t)
            p.rd128(vXF + 16*kc + 8, vXA+2, xb, ("x", 2))
            p.rd128(vXF + 16*kc + 12, vXA+3, xb, ("x", 3))
            if nt == 1: rdw(2, 0); rdw(3, 0)
            for t in range(nt):
                for n in range(2): p.tr(vT + 8 + 4*t + 2*n, rc, wb + n*512 + t*1024, ("c", t))
            if kc > 0:
                al.rel(("X", kc-1)); al.rel(("KV", kc-1) if atype else ("W", 0, kc-1))
                for u in g.plan(al, queue): g.issue(p, al, u)
            st = g.stats_ops(range(vXF + 16*kc, vXF + 16*kc + 8))
            for kk in range(4):
                ks = 4*kc + kk
                for t in range(nt):
                    p.wait_lg(("x", kk)); p.wait_lg(("w", kk, t))
                    f = vF + 4*((kk*nt + t) & 3)
                    x = vXF + 4*ks
                    c = 0 if ks == 0 else ACC[t]
                    p(mfma32(ACC[t], x, f, c) if atype else mfma32(ACC[t], f, x, c))
                    if nt == 2 and kk < 2: rdw(kk+2, t)
                if kk >= 1 or True:
                    if kk == 0: chunk = st[:24]
                    elif kk == 1: chunk = st[24:36]
                    elif kk == 2: chunk = st[36:]
                    else: chunk = []
                    for o in chunk: p(o)
            for t in range(nt):
                p.wait_lg(("c", t))
                cs = (vCS0, vCS1)[t]
                p(mfma16(cs, vSEL, vT + 8 + 4*t, 0 if kc == 0 else cs))
        t0 = vT
        p(f"v_and_b32 v{t0}, 31, v{vL}\nv_lshlrev_b32 v{t0}, 5, v{t0}\ns_lshl_b32 s{sT0}, s{sR}, 10\ns_add_u32 s{sT0}, s{sT0}, {SC_STAT}\nv_add_u32 v{t0}, s{sT0}, v{t0}")
        p(f"v_lshrrev_b32 v{t0+1}, 5, v{vL}\nv_lshl_add_u32 v{t0+1}, v{t0+1}, 3, v{t0}\ns_lshl_b32 s{sT0}, s{sC}, 4\nv_add_u32 v{t0+1}, s{sT0}, v{t0+1}")
        p.lds(f"ds_write_b64 v{t0+1}, v[{vS}:{vQ}]", "stw")
        for t in range(nt): g.cs_write(p, (vCS0, vCS1)[t], t)
        g.stat_addr = t0
    def stats_fin(g, p, atype):
        t = vT + 2
        p.lds(f"ds_read_b128 {vr(t)}, v{vT}", "st"); p.lds(f"ds_read_b128 {vr(t+4)}, v{vT} offset:16", "st")
        p.wait_lg0()
        p(f"v_add_f32 v{t}, v{t}, v{t+2}\nv_add_f32 v{t+4}, v{t+4}, v{t+6}\nv_add_f32 v{t+1}, v{t+1}, v{t+3}\nv_add_f32 v{t+5}, v{t+5}, v{t+7}")
        p(f"v_add_f32 v{t}, v{t}, v{t+4}\nv_add_f32 v{t+1}, v{t+1}, v{t+5}")
        p(f"v_mul_f32 v{t}, {f2u(-1/512)}, v{t}")
        p(f"v_mul_f32 v{t+1}, {f2u(1/512)}, v{t+1}\nv_fma_f32 v{t+1}, -v{t}, v{t}, v{t+1}")
        p(f"v_max_f32 v{t+1}, 0, v{t+1}\nv_add_f32 v{t+1}, {f2u(1e-5)}, v{t+1}")
        p(f"v_sqrt_f32 v{vIRS}, v{t+1}\nv_rcp_f32 v{vRS}, v{vIRS}")
        p(f"v_mul_f32 v{vRL}, {f2u(LOG2E)}, v{vRS}\nv_mul_f32 v{vC0}, {f2u(GC0)}, v{vRS}\nv_mul_f32 v{vC1}, v{vRS}, v{vRS}")
        p(f"v_mul_f32 v{vC1}, v{vC1}, v{vRS}\nv_mul_f32 v{vC1}, {f2u(GC1)}, v{vC1}")
        p(f"v_cvt_pk_bf16_f32 v{t+2}, v{t}, v{vIRS}")
        p(f"v_lshlrev_b32 v{t+3}, 16, v{t+2}\nv_and_b32 v{t+4}, 0xffff0000, v{t+2}")
        p(f"v_sub_f32 v{t+5}, v{t}, v{t+3}\nv_sub_f32 v{t+6}, v{vIRS}, v{t+4}")
        p(f"v_cvt_pk_bf16_f32 v{t+5}, v{t+3}, v{t+5}\nv_cvt_pk_bf16_f32 v{t+6}, v{t+6}, 0")
        p(f"v_cmp_gt_u32 vcc, 32, v{vL}")
        p(f"v_cndmask_b32 v{vXE}, 0, v{t+5}, vcc\nv_cndmask_b32 v{vXE+1}, 0, v{t+2}, vcc\nv_cndmask_b32 v{vXE+2}, 0, v{t+6}, vcc\nv_mov_b32 v{vXE+3}, 0")
        if atype:
            p(f"v_and_b32 v{t}, 31, v{vL}\nv_lshlrev_b32 v{t}, 2, v{t}\ns_lshl_b32 s{sT0}, s{sR}, 7\ns_add_u32 s{sT0}, s{sT0}, {SC_RS}\nv_add_u32 v{t}, s{sT0}, v{t}")
            p.lds(f"ds_write_b32 v{t}, v{vRL}", "rsw")
    def ext(g, p, acc, csoff, bias, transposed):
        t = vT
        p.lds(f"ds_read_b128 {vr(t)}, v{vCSr} offset:{csoff}", "cs"); p.wait_lg("cs")
        p(f"v_add_f32 v{t}, v{t}, v{t+1}\nv_add_f32 v{t+2}, v{t+2}, v{t+3}\nv_add_f32 v{t}, v{t}, v{t+2}")
        p(f"v_cvt_pk_bf16_f32 v{t+4}, v{t}, v{t}\nv_lshlrev_b32 v{t+1}, 16, v{t+4}\nv_sub_f32 v{t}, v{t}, v{t+1}")
        if bias is not None:
            p(f"v_lshlrev_b32 v{t+1}, 16, v{bias}\nv_cvt_pk_bf16_f32 v{t+5}, v{t}, v{t+1}\nv_mov_b32 v{t+6}, v{bias}")
        else:
            p(f"v_cvt_pk_bf16_f32 v{t+5}, v{t}, 0\nv_mov_b32 v{t+6}, 0")
        p(f"v_mov_b32 v{t+7}, 0")
        p(mfma32(acc, t+4, vXE, acc) if transposed else mfma32(acc, vXE, t+4, acc))
    def store_frags(g, p, src, soff):
        p(f"s_add_u32 s{sT0}, s{sHF}, {soff}")
        p.vmem(f"buffer_store_dwordx4 {vr(src)}, v{vL16}, {srd(SWS)}, s{sT0} offen{g.sc}", "hst")
        p.vmem(f"buffer_store_dwordx4 {vr(src+4)}, v{vL16}, {srd(SWS)}, s{sT0} offen offset:1024{g.sc}", "hst")
    def epi_gelu(g, p, acc, csoff, bias, soff):
        g.ext(p, acc, csoff, bias, True)
        t = vT + 8
        for b in range(2):
            A = [acc + 8*b + k for k in range(8)]; T = [t + k for k in range(8)]
            for x, y in zip(A, T): p(f"v_mul_f32 v{y}, v{x}, v{x}")
            for x, y in zip(A, T): p(f"v_fma_f32 v{y}, v{y}, v{vC1}, v{vC0}")
            for x, y in zip(A, T): p(f"v_mul_f32 v{y}, v{y}, v{x}")
            for x, y in zip(A, T): p(f"v_exp_f32 v{y}, v{y}")
            for x, y in zip(A, T): p(f"v_fma_f32 v{y}, v{y}, v{vIRS}, v{vIRS}")
            for x, y in zip(A, T): p(f"v_rcp_f32 v{y}, v{y}")
            for x, y in zip(A, T): p(f"v_mul_f32 v{y}, v{y}, v{x}")
            for k in range(4): p(f"v_cvt_pk_bf16_f32 v{vT + 4*b + k}, v{T[2*k]}, v{T[2*k+1]}")
        g.store_frags(p, vT, soff)
    def phi(g, p, acc, scale, dst, cl, ce):
        t = vT + 8
        for b in range(2):
            A = [acc + 8*b + k for k in range(8)]; T = [t + k for k in range(8)]
            for k, x in enumerate(A): p(f"v_mul_f32 v{x}, v{x}, v{scale(8*b+k)}")
            for x, y in zip(A, T): p(f"v_exp_f32 v{y}, v{x} clamp")
            for x in A: p(f"v_max_f32 v{x}, 0, v{x}")
            for x in A: p(f"v_fma_f32 v{x}, v{x}, v{cl}, v{ce}")
            for x, y in zip(A, T): p(f"v_add_f32 v{x}, v{x}, v{y}")
            for k in range(4): p(f"v_cvt_pk_bf16_f32 v{dst + 4*b + k}, v{A[2*k]}, v{A[2*k+1]}")
    def epi_q(g, p, acc, csoff, soff):
        g.ext(p, acc, csoff, None, True)
        p(f"v_mov_b32 v{vCS0}, {f2u(LN2)}\nv_mov_b32 v{vCS0+1}, {f2u(1e-6)}")
        g.phi(p, acc, lambda k: vRL, vT, vCS0, vCS0+1)
        g.store_frags(p, vT, soff)
    def epi_kv(g, p):
        K, V = ACC[0], ACC[1]
        g.ext(p, K, 0, None, False)
        g.ext(p, V, 1024, None, False)
        t = vCS0 + 2
        p(f"v_lshrrev_b32 v{t}, 5, v{vL}\nv_lshlrev_b32 v{t}, 4, v{t}\ns_lshl_b32 s{sT0}, s{sR}, 7\ns_add_u32 s{sT0}, s{sT0}, {SC_RS}\nv_add_u32 v{t}, s{sT0}, v{t}")
        for q in range(4): p.lds(f"ds_read_b128 {vr(vF+4*q)}, v{t} offset:{32*q}", "rl")
        p(f"v_mov_b32 v{vCS0}, {f2u(LN2)}\nv_mov_b32 v{vCS0+1}, {f2u(1e-6)}")
        for k in range(4): p(f"v_mov_b32 v{vCS1+k}, 0x3f803f80")
        p.wait_lg("rl")
        g.phi(p, K, lambda k: vF + k, vT, vCS0, vCS0+1)
        for k in range(16): p(f"v_mul_f32 v{V+k}, v{V+k}, v{vF+k}")
        for k in range(8): p(f"v_cvt_pk_bf16_f32 v{vT+8+k}, v{V+2*k}, v{V+2*k+1}")
        p(mfma32(K, vT, vT+8, 0)); p(mfma32(V, vT, vCS1, 0))
        p(mfma32(K, vT+4, vT+12, K)); p(mfma32(V, vT+4, vCS1, V))
        p(f"v_and_b32 v{t}, 16, v{vL}\nv_cmp_eq_u32 vcc, 0, v{t}\nv_lshlrev_b32 v{t}, 3, v{vL}")
        for k in range(8): p(f"v_cndmask_b32 v{K+k}, v{V+k}, v{K+k}, vcc")
        for k in range(8, 16): p(f"v_cndmask_b32 v{K+k}, v{K+k}, v{V+k}, vcc")
        for rp in range(8):
            p(f"s_add_u32 s{sT0}, s{sKVP}, {rp*32768}")
            p.vmem(f"buffer_store_dwordx2 {vr(K+2*rp,2)}, v{t}, {srd(SWS)}, s{sT0} offen{g.sc}", "kvst")
    def mm_pass(g, p, al, acc, kind, s, cstile):
        def addr(ks, n):
            kc, kk = ks >> 2, ks & 3
            if kind == "Hh":
                tk = ks ^ 2
                return vHa, al.base(("Hh", tk >> 3)) + (tk & 7)*1024 + n*256
            u = ("W", s, kc) if kind == "W" else ("Q", kc)
            return (vWa if kk < 2 else vWb), al.base(u) + (kk & 1)*2048 + n*512
        def caddr(kc, n):
            if kind == "Hh": return vHc, al.base(("Hh", kc >> 1)) + (kc & 1)*4096 + n*256
            u = ("W", s, kc) if kind == "W" else ("Q", kc)
            return vWc, al.base(u) + n*512
        p("s_setprio 2")
        D = 4
        def rd(ks):
            for n in range(2):
                r, o = addr(ks, n); p.tr(vF + 4*(ks & 3) + 2*n, r, o, ("w", ks))
        def rdc(kc):
            for n in range(2):
                r, o = caddr(kc, n); p.tr(vT + 8 + 4*(kc & 1) + 2*n, r, o, ("c", kc))
        for ks in range(D-1): rd(ks)
        rdc(0)
        for ks in range(32):
            if ks + D - 1 < 32: rd(ks + D - 1)
            p.wait_lg(("w", ks))
            p(mfma32(acc, vF + 4*(ks & 3), vXF + 4*ks, 0 if ks == 0 else acc))
            if ks & 3 == 1:
                kc = ks >> 2
                p.wait_lg(("c", kc))
                p(mfma16(vCS0, vSEL, vT + 8 + 4*(kc & 1), 0 if kc == 0 else vCS0))
                if kc < 7: rdc(kc + 1)
        g.cs_write(p, vCS0, cstile)
        p("s_setprio 0")
    def bar(g, paths, al, queue, waits, frees):
        for f in frees: al.rel(f)
        newu = g.plan(al, queue)
        def go(p):
            p.wait_lg0()
            for w in waits: p.wait_vm(w)
            p("s_barrier")
            for u in newu: g.issue(p, al, u)
        return go
    def role_H(g, after):
        a = g.a; p = Path(a); al = Alloc()
        a("L_roleH:")
        g.wdma_voff(vWd, 3584, vT, vT+1)
        a(f"s_mul_i32 s{sWO_}, s{sW}, {8*3584}\ns_sub_u32 s{sT}, s{sT}, 8\ns_mul_i32 s{sT0}, s{sT}, 384\ns_add_u32 s{sWO_}, s{sWO_}, s{sT0}")
        queue = []
        for kc in range(8): queue += [("X", kc), ("W", 0, kc)]
        for s in (1, 2): queue += [("W", s, kc) for kc in range(8)]
        if g.fused: queue += [("B", u) for u in range(9)]
        for u in g.plan(al, queue): g.issue(p, al, u)
        a(f"v_and_b32 v{vT}, 31, v{vL}\nv_lshlrev_b32 v{vT}, 1, v{vT}\ns_lshl_b32 s{sT1}, s{sC}, 6\ns_add_u32 s{sT0}, s{sT0}, s{sT1}")
        a(f"s_mul_i32 s{sT0}, s{sT}, 384\ns_add_u32 s{sT0}, s{sT0}, s{sT1}")
        for s in range(3): p.vmem(f"buffer_load_ushort v{vB1+s}, v{vT}, {srd(SB1)}, s{sT0} offen offset:{128*s}", "b1")
        a(f"s_lshl_b32 s{sHF}, s{sI}, 2\ns_add_u32 s{sHF}, s{sHF}, s{sR}\ns_mul_i32 s{sHF}, s{sHF}, {HF_RT}")
        a(f"s_mul_i32 s{sT0}, s{sT}, {12*1024}\ns_add_u32 s{sHF}, s{sHF}, s{sT0}\ns_lshl_b32 s{sT0}, s{sC}, 11\ns_add_u32 s{sHF}, s{sHF}, s{sT0}")
        g.p1_setup2(False)
        g.i0(p, al, queue, False)
        S = lambda s: [("W", s, kc) for kc in range(8)]
        e0 = g.bar(None, al, queue, ["b1"] + S(1), [("X", 7), ("W", 0, 7)])
        e0(p); g.stats_fin(p, False)
        b12 = g.bar(None, al, queue, [], [])
        b23 = g.bar(None, al, queue, S(2), S(1))
        b34 = g.bar(None, al, queue, [], [])
        b45 = g.bar(None, al, queue, [], S(2))
        a(f"s_cmp_eq_u32 s{sC}, 1\ns_cbranch_scc1 L_H1")
        q = p.fork()
        g.epi_gelu(p, ACC[0], 0, vB1, 0); b12(p)
        g.mm_pass(p, al, ACC[1], "W", 1, 1); b23(p)
        g.epi_gelu(p, ACC[1], 1024, vB1+1, 4096); b34(p)
        g.mm_pass(p, al, ACC[0], "W", 2, 2); b45(p)
        g.epi_gelu(p, ACC[0], 2048, vB1+2, 8192)
        after(p, al, queue, "H0")
        a("L_H1:"); p = q
        g.mm_pass(p, al, ACC[1], "W", 1, 1); b12(p)
        g.epi_gelu(p, ACC[0], 0, vB1, 0); g.epi_gelu(p, ACC[1], 1024, vB1+1, 4096); b23(p)
        g.mm_pass(p, al, ACC[0], "W", 2, 2); b34(p)
        g.epi_gelu(p, ACC[0], 2048, vB1+2, 8192); b45(p)
        after(p, al, queue, "H1")
    def role_A(g, after):
        a = g.a; p = Path(a); al = Alloc()
        a("L_roleA:")
        g.wdma_voff(vWd, 3072, vT, vT+1)
        a(f"s_mul_i32 s{sWO_}, s{sW}, {8*3072}\ns_lshl_b32 s{sT0}, s{sT}, 7\ns_add_u32 s{sWO_}, s{sWO_}, s{sT0}")
        queue = []
        for kc in range(8): queue += [("X", kc), ("KV", kc)]
        queue += [("Hh", k) for k in range(4)] + [("Q", kc) for kc in range(8)]
        if g.fused: queue += [("B", u) for u in range(9)]
        for u in g.plan(al, queue): g.issue(p, al, u)
        a(f"v_lshrrev_b32 v{vT}, 2, v{vL}\nv_mul_u32_u24 v{vHd}, 3584, v{vT}\nv_and_b32 v{vT}, 3, v{vL}\nv_lshl_add_u32 v{vHd}, v{vT}, 4, v{vHd}")
        a(f"s_lshl_b32 s{sT0}, s{sT}, 6\ns_add_u32 s{sT0}, s{sT0}, 3072\ns_mul_i32 s{sWO2}, s{sW}, {16*3584}\ns_add_u32 s{sWO2}, s{sWO2}, s{sT0}")
        a(f"v_and_b32 v{vT}, 31, v{vL}\nv_lshlrev_b32 v{vT}, 1, v{vT}")
        p.vmem(f"buffer_load_ushort v{vB1}, v{vT}, {srd(SB1)}, s{sT0} offen", "b1")
        a(f"s_lshl_b32 s{sHF}, s{sI}, 2\ns_add_u32 s{sHF}, s{sHF}, s{sR}\ns_lshl_b32 s{sKVP}, s{sHF}, 9\ns_mul_i32 s{sHF}, s{sHF}, {HF_RT}")
        a(f"s_lshl_b32 s{sT0}, s{sT}, 1\ns_add_u32 s{sT0}, s{sT0}, s{sC}\ns_lshl_b32 s{sT0}, s{sT0}, 18\ns_add_u32 s{sKVP}, s{sKVP}, s{sT0}\ns_add_u32 s{sKVP}, s{sKVP}, {WS_KVP}")
        a(f"s_lshl_b32 s{sT0}, s{sT}, 11\ns_add_u32 s{sHF}, s{sHF}, s{sT0}")
        g.p1_setup2(True)
        g.i0(p, al, queue, True)
        HH = [("Hh", k) for k in range(4)]; QQ = [("Q", kc) for kc in range(8)]
        e0 = g.bar(None, al, queue, ["b1"] + HH, [("X", 7), ("KV", 7)])
        e0(p); g.stats_fin(p, True)
        b12 = g.bar(None, al, queue, QQ, HH)
        b23 = g.bar(None, al, queue, [], [])
        b34 = g.bar(None, al, queue, [], QQ)
        def qoff(p):
            p(f"s_lshl_b32 s{sT0}, s{sT}, 11\ns_add_u32 s{sHF}, s{sHF}, s{sT0}\ns_lshl_b32 s{sT0}, s{sC}, 11\ns_add_u32 s{sHF}, s{sHF}, s{sT0}")
        a(f"s_cmp_eq_u32 s{sC}, 1\ns_cbranch_scc1 L_A1")
        q = p.fork()
        p.wait_lg0()
        g.epi_kv(p); b12(p)
        g.mm_pass(p, al, ACC[2], "Q", 0, 2); b23(p)
        qoff(p); g.epi_q(p, ACC[2], 2048, 112*1024); b34(p)
        after(p, al, queue, "A0")
        a("L_A1:"); p = q
        g.mm_pass(p, al, ACC[2], "Hh", 0, 2.5); b12(p)
        g.epi_kv(p); g.epi_gelu(p, ACC[2], 2560, vB1, 96*1024); b23(p)
        g.mm_pass(p, al, ACC[2], "Q", 0, 2); b34(p)
        qoff(p); g.epi_q(p, ACC[2], 2048, 112*1024)
        after(p, al, queue, "A1")
    def phase1(g, after):
        a = g.a
        g.p1_setup()
        a(f"s_cmp_ge_u32 s{sT}, 8\ns_cbranch_scc1 L_roleH")
        g.role_A(after); g.role_H(after)
    def kvreduce(g, p, si, sj):
        p(f"s_lshl_b32 s{sT0}, s{sj}, 4\ns_add_u32 s{sT0}, s{sT0}, s{si}\ns_lshl_b32 s{sT0}, s{sT0}, 15\ns_add_u32 s{sT0}, s{sT0}, {WS_KVP}")
        for k in range(32):
            if k and k % 4 == 0: p(f"s_add_u32 s{sT0}, s{sT0}, 4096")
            p.vmem(f"buffer_load_dwordx4 {vr(vXF+4*k)}, v{vL16}, {srd(SWS)}, s{sT0} offen offset:{(k&3)*1024}{g.sc}", ("kr", k))
        for k in range(1, 32):
            p.wait_vm(("kr", k))
            for e in range(4): p(f"v_add_f32 v{vXF+e}, v{vXF+e}, v{vXF+4*k+e}")
        t = vT
        for e in range(4): p(f"v_mov_b32 v{t+e}, v{vXF+e}")
        for e in range(4): p(f"v_permlane32_swap_b32 v{t+e}, v{vXF+e}")
        for e in range(4): p(f"v_add_f32 v{t+e}, v{t+e}, v{vXF+e}")
        p(f"v_cmp_gt_u32 vcc, 32, v{vL}\nv_cndmask_b32 v{t}, v{t+2}, v{t}, vcc\nv_cndmask_b32 v{t+1}, v{t+3}, v{t+1}, vcc")
        p(f"s_bfe_u32 s{sT1}, s{si}, 0x10002\nv_bfe_u32 v{t+2}, v{vL}, 3, 1\nv_cmp_eq_u32 vcc, s{sT1}, v{t+2}")
        p(f"v_mov_b32 v{t+3}, {f2u(LN2)}\nv_cndmask_b32 v{t+2}, 1.0, v{t+3}, vcc\nv_mul_f32 v{t}, v{t}, v{t+2}\nv_mul_f32 v{t+1}, v{t+1}, v{t+2}")
        p(f"v_cvt_pk_bf16_f32 v{t}, v{t}, v{t+1}")
        p(f"v_and_b32 v{t+1}, 31, v{vL}\nv_lshlrev_b32 v{t+1}, 5, v{t+1}\nv_lshrrev_b32 v{t+2}, 5, v{vL}\nv_lshl_add_u32 v{t+1}, v{t+2}, 4, v{t+1}")
        p(f"s_lshl_b32 s{sT0}, s{sj}, 2\ns_lshr_b32 s{sT1}, s{si}, 2\ns_add_u32 s{sT0}, s{sT0}, s{sT1}\ns_lshl_b32 s{sT0}, s{sT0}, 10")
        p(f"s_and_b32 s{sT1}, s{si}, 3\ns_lshl_b32 s{sT1}, s{sT1}, 2\ns_add_u32 s{sT0}, s{sT0}, s{sT1}\ns_add_u32 s{sT0}, s{sT0}, {WS_KVF}")
        p.vmem(f"buffer_store_dword v{t}, v{t+1}, {srd(SWS)}, s{sT0} offen{g.sc}", "kvf")
    def p2_setup_dma(g):
        a = g.a
        g.wdma_voff(vBd0, 1024, vT, vT+1)
        a(f"v_add_u32 v{vBd1}, 7168, v{vBd0}")
        a(f"s_lshl_b32 s{sB0}, s{sN}, 7")
    def issue_B(g, p, u, b):
        if u < 12:   mul, add, sr = 12*16384, u*16384, SW2
        elif u < 14: mul, add, sr = 2*16384, (96 + u - 12)*16384, SW2
        else:        mul, add, sr = 4*16384, (u - 14)*16384, SWO
        p(f"s_add_u32 m0, s{sW2K}, {b}\ns_mul_i32 s{sT0}, s{sW}, {mul}\ns_add_u32 s{sT0}, s{sT0}, s{sB0}\ns_add_u32 s{sT0}, s{sT0}, {add}")
        p.vmem(f"buffer_load_dwordx4 v{vBd0}, {srd(sr)}, s{sT0} offen lds", ("B", u))
        p.vmem(f"buffer_load_dwordx4 v{vBd1}, {srd(sr)}, s{sT0} offen offset:1024 lds", ("B", u))
    def phase2(g, p, bpos, pending):
        a = g.a
        AC = lambda t, m: 192 + 16*(2*t + m)
        BR = lambda u: 120 + 8*u
        BJ = lambda k: 104 + 8*(k & 1)
        ND = 8
        AR = lambda u, m: 40 + 8*(u % ND) + 4*m
        KVF = 24
        vA1, vBt0, vBt1, vO = 8, 9, 10, 11
        vXR, vB2R = 12, 16
        t0, t1 = 20, 21
        for u, b in pending:
            bpos[u] = b; g.issue_B(p, u, b)
        p(f"v_add_u32 v{vA1}, {HF_RT}, v{vL16}")
        g.tr_inrow(vBt0, t0, t1)
        p(f"v_lshrrev_b32 v{t0}, 5, v{vL}\nv_lshl_add_u32 v{vBt0}, v{t0}, 9, v{vBt0}\nv_add_u32 v{vBt0}, s{sW2K}, v{vBt0}\nv_xor_b32 v{vBt1}, 64, v{vBt0}")
        p.win.pop(vBt0, None); p.win.pop(vBt1, None)
        p(f"s_mul_i32 s{sA0}, s{sRB}, {2*HF_RT}")
        def loadA(u):
            if u < 12:   mul, add = 12*1024, u*1024
            elif u < 14: mul, add = 2*1024, (96 + u - 12)*1024
            else:        mul, add = 4*1024, (112 + u - 14)*1024
            p(f"s_mul_i32 s{sT0}, s{sW}, {mul}\ns_add_u32 s{sT0}, s{sT0}, s{sA0}\ns_add_u32 s{sT0}, s{sT0}, {add}")
            p.vmem(f"buffer_load_dwordx4 {vr(AR(u,0))}, v{vL16}, {srd(SWS)}, s{sT0} offen{g.sc}", ("A", u))
            p.vmem(f"buffer_load_dwordx4 {vr(AR(u,1))}, v{vA1}, {srd(SWS)}, s{sT0} offen{g.sc}", ("A", u))
        def rdB(u, dst):
            for t in range(2):
                for n in range(2): p.tr(dst + 4*t + 2*n, (vBt0, vBt1)[t], bpos[u] + n*1024, ("b", u))
        if not g.fused:
            for u in range(ND): loadA(u)
        for u in range(9):
            p.wait_vm(("B", u)); rdB(u, BR(u))
            if u >= 1:
                p.wait_lg(("b", u-1)); bpos[u+8] = bpos[u-1]; g.issue_B(p, u+8, bpos[u-1])
        p.wait_lg0(); bpos[17] = bpos[8]; g.issue_B(p, 17, bpos[8])
        if g.fused:
            g.wait_h(p)
            for u in range(ND): loadA(u)
        p(f"v_lshrrev_b32 v{t0}, 3, v{vL}\nv_lshlrev_b32 v{vO}, 10, v{t0}\nv_and_b32 v{t0}, 7, v{vL}\nv_lshlrev_b32 v{t0}, 4, v{t0}\nv_add_u32 v{vO}, v{vO}, v{t0}")
        p(f"s_lshl_b32 s{sT2}, s{sRB}, 16\ns_lshl_b32 s{sT1}, s{sW}, 13\ns_add_u32 s{sT2}, s{sT2}, s{sT1}\ns_add_u32 s{sT2}, s{sT2}, s{sB0}")
        p.vmem(f"buffer_load_dwordx4 {vr(vXR)}, v{vO}, {srd(SX)}, s{sT2} offen", "xr")
        p.vmem(f"buffer_load_dwordx4 {vr(vB2R)}, v{t0}, {srd(SB2)}, s{sB0} offen", "xr")
        def loadKV():
            p(f"s_lshl_b32 s{sT0}, s{sW}, 12\ns_add_u32 s{sT0}, s{sT0}, {WS_KVF}")
            for k in range(4): p.vmem(f"buffer_load_dwordx4 {vr(KVF+4*k)}, v{vL16}, {srd(SWS)}, s{sT0} offen offset:{k*1024}{g.sc}", "kvf")
        for u in range(18):
            if u == 8:
                p.wait_vm(("B", 9)); rdB(9, BJ(9))
            if 9 <= u < 17:
                p.wait_vm(("B", u+1)); rdB(u+1, BJ(u+1))
            if u == 11:
                if g.fused: g.wait_kvf(p)
                loadKV()
            p.wait_vm(("A", u))
            bf = BR(u) if u < 9 else BJ(u)
            if u >= 14:
                p.wait_vm("kvf")
                hd = u - 14
                for m in range(2):
                    D = 120 + 16*m
                    p(mfma32(D, KVF + 4*hd, AR(u, m), 0))
                for m in range(2):
                    D = 120 + 16*m
                    num, den = (D, D+8) if hd % 2 == 0 else (D+8, D)
                    p(f"v_add_f32 v{den}, {f2u(1e-6)}, v{den}\nv_rcp_f32 v{den}, v{den}")
                    for k in range(8): p(f"v_mul_f32 v{num+k}, v{num+k}, v{den}")
                    for k in range(4): p(f"v_cvt_pk_bf16_f32 v{AR(u,m)+k}, v{num+2*k}, v{num+2*k+1}")
            if u >= 9: p.wait_lg(("b", u))
            for t in range(2):
                for m in range(2):
                    p(mfma32(AC(t, m), bf + 4*t, AR(u, m), 0 if u == 0 else AC(t, m)))
            if u + ND < 18:
                if g.fused and u + ND == 12: g.wait_a(p)
                loadA(u + ND)
        vb = 22
        p(f"v_and_b32 v{t0}, 15, v{vL}\nv_lshrrev_b32 v{t1}, 5, v{vL}\nv_xor_b32 v{t0}, v{t0}, v{t1}\nv_lshlrev_b32 v{vb}, 4, v{t0}")
        p(f"v_and_b32 v{t0}, 7, v{vL}\nv_lshl_add_u32 v{vb}, v{t0}, 8, v{vb}\nv_bfe_u32 v{t0}, v{vL}, 3, 2\nv_lshl_add_u32 v{vb}, v{t0}, 14, v{vb}\nv_add_u32 v{vb}, s{sW2K}, v{vb}")
        k = 0
        for m in range(2):
            for t in range(2):
                for qd in range(4):
                    r = KVF + (k & 7); k += 1
                    p(f"v_xor_b32 v{r}, {((8*t + 2*qd) << 4) | (m << 16)}, v{vb}")
                    p.lds(f"ds_write_b128 v{r}, {vr(AC(t,m) + 4*qd)}", "pw")
        p(f"v_lshrrev_b32 v{t0}, 3, v{vL}\nv_and_b32 v{t1}, 7, v{vL}\nv_lshlrev_b32 v{t1}, 1, v{t1}\nv_xor_b32 v{t1}, v{t1}, v{t0}")
        p(f"s_and_b32 s{sT0}, s{sW}, 1\ns_lshl_b32 s{sT0}, s{sT0}, 3\nv_xor_b32 v{t1}, s{sT0}, v{t1}\nv_lshlrev_b32 v{t1}, 4, v{t1}")
        p(f"v_lshl_add_u32 v{t1}, v{t0}, 8, v{t1}\ns_lshl_b32 s{sT0}, s{sW}, 14\nv_add_u32 v{t1}, s{sT0}, v{t1}\nv_xor_b32 v{t0}, 16, v{t1}")
        p.wait_lg0(); p("s_barrier")
        for s in range(8):
            p.lds(f"ds_read_b128 {vr(40 + 8*s)}, v{t1} offset:{s*2048}", ("pr", s))
            p.lds(f"ds_read_b128 {vr(44 + 8*s)}, v{t0} offset:{s*2048}", ("pr", s))
        p.wait_vm("xr")
        E = 104
        for k in range(4):
            p(f"v_lshlrev_b32 v{E+2*k}, 16, v{vXR+k}\nv_and_b32 v{E+2*k+1}, 0xffff0000, v{vXR+k}")
            p(f"v_lshlrev_b32 v{E+8+2*k}, 16, v{vB2R+k}\nv_and_b32 v{E+8+2*k+1}, 0xffff0000, v{vB2R+k}")
        for k in range(8): p(f"v_add_f32 v{E+k}, v{E+k}, v{E+8+k}")
        for s in range(8):
            p.wait_lg(("pr", s))
            for k in range(8): p(f"v_add_f32 v{E+k}, v{E+k}, v{40+8*s+k}")
        for k in range(4): p(f"v_cvt_pk_bf16_f32 v{E+8+k}, v{E+2*k}, v{E+2*k+1}")
        p.vmem(f"buffer_store_dwordx4 {vr(E+8)}, v{vO}, {srd(SOUT)}, s{sT2} offen", "out")
        p("s_endpgm")
vBd0, vBd1 = 7, 0
HDR = open(f"cdna_kernels/{KN}.s.ref").read().split("; @launch")[0]
def kdesc(name):
    return f""".amdhsa_kernel {name}
  .amdhsa_next_free_vgpr 256
  .amdhsa_next_free_sgpr 102
  .amdhsa_accum_offset 256
  .amdhsa_group_segment_fixed_size 0
  .amdhsa_kernarg_size 88
  .amdhsa_user_sgpr_count 2
  .amdhsa_user_sgpr_kernarg_segment_ptr 1
  .amdhsa_system_sgpr_workgroup_id_x 1
.end_amdhsa_kernel
"""
def khead(name): return f".globl {name}\n.p2align 8\n.type {name},@function\n{name}:\n"
def build3():
    names = [KN + "_kernel", "kvr_kernel", "g2_kernel"]
    out = HDR
    out += f"; @launch kernel={names[0]} grid=(256,1,1) block=(512,1,1) lds=163840\n"
    out += f"; @launch kernel={names[1]} grid=(128,1,1) block=(64,1,1) lds=0\n"
    out += f"; @launch kernel={names[2]} grid=(256,1,1) block=(512,1,1) lds=163840\n"
    out += '.amdgcn_target "amdgcn-amd-amdhsa--gfx950"\n.text\n'
    g = Gen(); g.prologue(256)
    g.phase1(lambda p, al, q, tag: p("s_endpgm"))
    g.a("L_exit:\ns_endpgm")
    out += khead(names[0]) + g.a.finish()
    g = Gen(); g.prologue(128)
    g.a(f"s_and_b32 s{sI}, s2, 15\ns_lshr_b32 s{sT}, s2, 4")
    g.kvreduce(Path(g.a), sI, sT); g.a("L_exit:\ns_endpgm")
    out += khead(names[1]) + g.a.finish().replace("L_exit", "L_exit1")
    g = Gen(); g.prologue(256); g.p2_setup_dma()
    g.phase2(Path(g.a), {}, [(u, u*16384) for u in range(9)]); g.a("L_exit:\ns_endpgm")
    out += khead(names[2]) + g.a.finish().replace("L_exit", "L_exit2")
    out += '.section .rodata,"a"\n.p2align 6\n' + "".join(kdesc(n) + ".p2align 6\n" for n in names)
    return out
if __name__ == "__main__":
    mode = sys.argv[1] if len(sys.argv) > 1 else "3"
    dst = sys.argv[2] if len(sys.argv) > 2 else f"cdna_kernels/{KN}.s"
    open(dst, "w").write(build3())
```

```python
import sys, copy, struct
sys.path.insert(0, "dev")
from asmb import Asm
KN = "parallel_sum__linear_attn_block__dense_activation_gelu__prompt"
def f2u(x): return "0x%08x" % struct.unpack("<I", struct.pack("<f", x))[0]
LOG2E = 1.4426950408889634; LN2 = 0.6931471805599453
GC0 = -2*0.7978845608028654*LOG2E; GC1 = GC0*0.044715
WS_HF = 0; HF_RT = 144*1024
WS_KVP = 10 << 20
WS_KVF = 14 << 20
WS_FLG = (14 << 20) + (64 << 10)
WS_STAMP = 15 << 20
WS_SIZE = 17 << 20
import os
LIM_H = int(os.environ.get('LIM_H', 5)); LIM_A = int(os.environ.get('LIM_A', 6)); PRO_H = int(os.environ.get('PRO_H', 6)); PRO_A = int(os.environ.get('PRO_A', 8))
STAMPS = int(os.environ.get("STAMPS", "0")); STAMPI = "s_memrealtime" if STAMPS == 1 else "s_memtime"
SLOT = 8192; NSLOT = 19; SCR = 19*SLOT
SC_STAT = SCR; SC_RS = SCR + 4096; SC_CS = SCR + 4608
SX, SQ, S1, SWS, SW2, SWO, SOUT, SB1, SB2, SDBG = 4, 8, 12, 16, 20, 24, 28, 32, 36, 40
sW, sR, sC, sI, sT = 44, 45, 46, 47, 48
sW1K, sW2K, sXO, sWO_, sWO2, sHF, sKVP, sT0, sT1, sT2 = 49, 50, 51, 52, 53, 54, 55, 56, 57, 58
sRB, sN, sA0, sB0, sROT = 59, 60, 61, 62, 63
sTX, sTW = 64, 72
sNON = 94
POLLMAX = 20000
def srd(n): return f"s[{n}:{n+3}]"
def vr(a, n=4): return f"v[{a}:{a+n-1}]"
vL, vX0, vX1, vWd, vHd, vL16 = 1, 2, 3, 4, 5, 6
vXA = 8
vWa, vWb, vWc = 12, 13, 14
vKa, vKb, vKc = 15, 16, 17
vHa, vHc = 18, 19
vS, vQ = 20, 21
vC0, vC1, vIRS, vSTASH, vRL = 22, 23, 24, 25, 26
vRS = 63
vB1 = 27
vCSa, vCSr = 30, 31
vXE = 32
vSEL = 36
vCS0, vCS1 = 40, 44
vT = 48
vF = 64
ACC = [80, 96, 112]
vNON = 112
vXF = 128
class Path:
    def __init__(s, a): s.a = a; s.vm = []; s.lg = []; s.win = {}; s.pend = []; s.stash = vSTASH
    def fork(s):
        p = Path(s.a); p.vm = list(s.vm); p.lg = list(s.lg); p.win = dict(s.win); p.pend = list(s.pend); p.later = list(getattr(s, 'later', [])); return p
    def __call__(s, t): s.a(t)
    def vmem(s, t, tag=None): s.a(t); s.vm.append(tag)
    def lds(s, t, tag=None): s.a(t); s.lg.append(tag)
    def _cnt(s, q, tag):
        idx = [k for k, x in enumerate(q) if x == tag]
        if not idx: return None
        return len(q) - 1 - idx[-1]
    def wait_vm(s, tag):
        n = s._cnt(s.vm, tag)
        if n is None: return
        n = min(n, 63); s.a(f"s_waitcnt vmcnt({n})"); s.vm = s.vm[len(s.vm)-n:] if n else []
    def wait_lg(s, tag):
        n = s._cnt(s.lg, tag)
        if n is None: return
        n = min(n, 15); s.a(f"s_waitcnt lgkmcnt({n})"); s.lg = s.lg[len(s.lg)-n:] if n else []
    def wait_lg0(s, force=False):
        if s.lg or force or s.pend: s.a("s_waitcnt lgkmcnt(0)"); s.lg = []
        for idx, r in s.pend: s.a(f"v_writelane_b32 v{s.stash}, s{r}, {idx}")
        s.pend = []
    def wait_vm0(s):
        s.a("s_waitcnt vmcnt(0)"); s.vm = []
    def la(s, reg, off):
        w = off >> 16; cur = s.win.get(reg, 0)
        if w != cur:
            s.a(f"v_add_u32 v{reg}, {((w-cur) << 16) & 0xffffffff:#x}, v{reg}"); s.win[reg] = w
        return f"v{reg}", off & 0xffff
    def tr(s, dst, reg, off, tag):
        r, o = s.la(reg, off); s.lds(f"ds_read_b64_tr_b16 {vr(dst,2)}, {r} offset:{o}", tag)
    def rd128(s, dst, reg, off, tag):
        r, o = s.la(reg, off); s.lds(f"ds_read_b128 {vr(dst)}, {r} offset:{o}", tag)
class Alloc:
    def __init__(s): s.free = [True]*NSLOT; s.pos = {}
    def get(s, name, n, cand):
        for p in cand:
            if p + n <= NSLOT and all(s.free[p:p+n]):
                for q in range(p, p+n): s.free[q] = False
                s.pos[name] = (p, n); return p
        return None
    def rel(s, name):
        p, n = s.pos[name]
        for q in range(p, p+n): s.free[q] = True
    def base(s, name): return s.pos[name][0]*SLOT
def mfma32(d, a, b, c): return f"v_mfma_f32_32x32x16_bf16 {vr(d,16)}, {vr(a)}, {vr(b)}, {c if c == 0 else vr(c,16)}"
def mfma16(d, a, b, c): return f"v_mfma_f32_16x16x32_bf16 {vr(d,4)}, {vr(a)}, {vr(b)}, {c if c == 0 else vr(c,4)}"

class Gen:
    def __init__(g, fused=False):
        g.stamps = STAMPS; g.a = Asm(); g.fused = fused; g.sc = " sc1" if fused else ""
    def stamp(g, p, idx):
        if not g.stamps: return
        if len(p.pend) == 7: p.wait_lg0(True)
        r = 80 + 2*len(p.pend); p(f"{STAMPI} s[{r}:{r+1}]"); p.pend.append((idx, r))
    def stamp_out(g, p, region):
        if not g.stamps: return
        g.stamp(p, 63)
        p("s_memtime s[100:101]"); p.wait_lg0(True)
        p(f"s_sub_u32 s100, s100, s96\nv_writelane_b32 v{p.stash}, s100, 62")
        p(f"s_lshl_b32 s{sT0}, s2, 3\ns_add_u32 s{sT0}, s{sT0}, s{sW}\ns_lshl_b32 s{sT0}, s{sT0}, 8\ns_add_u32 s{sT0}, s{sT0}, {WS_STAMP + region*(512<<10)}")
        p(f"v_lshlrev_b32 v{vT+1}, 2, v{vL}")
        p.vmem(f"buffer_store_dword v{p.stash}, v{vT+1}, {srd(SWS)}, s{sT0} offen")
    def prologue(g, nwg):
        a = g.a
        a(f"s_cmp_ge_u32 s2, {nwg}\ns_cbranch_scc1 L_exit")
        if g.stamps: a("s_memrealtime s[98:99]\ns_memtime s[96:97]")
        a("s_load_dwordx16 s[64:79], s[0:1], 0\ns_load_dwordx4 s[80:83], s[0:1], 64\ns_load_dwordx2 s[84:85], s[0:1], 80")
        a(f"v_lshrrev_b32 v2, 6, v0\nv_and_b32 v{vL}, 63, v0\nv_readfirstlane_b32 s{sW}, v2")
        a(f"s_and_b32 s{sR}, s{sW}, 3\ns_lshr_b32 s{sC}, s{sW}, 2\ns_lshl_b32 s{sW1K}, s{sW}, 10\ns_lshl_b32 s{sW2K}, s{sW}, 11")
        a(f"s_and_b32 s{sT0}, s2, 7\ns_lshr_b32 s{sT1}, s2, 3")
        a(f"s_lshr_b32 s{sROT}, s{sT1}, 2\ns_and_b32 s{sI}, s{sT0}, 1\ns_lshl_b32 s{sI}, s{sI}, 3\ns_add_u32 s{sI}, s{sI}, s{sROT}")
        a(f"s_and_b32 s{sT}, s{sT0}, 6\ns_and_b32 s{sT2}, s{sT1}, 1\ns_add_u32 s{sT}, s{sT}, s{sT2}\ns_and_b32 s{sT2}, s{sT1}, 2\ns_lshl_b32 s{sT2}, s{sT2}, 2\ns_add_u32 s{sT}, s{sT}, s{sT2}")
        a(f"s_and_b32 s{sT2}, s{sT1}, 3\ns_lshl_b32 s{sT2}, s{sT2}, 1\ns_add_u32 s{sROT}, s{sROT}, s{sT2}")
        a(f"s_lshr_b32 s{sRB}, s{sT1}, 3\ns_lshl_b32 s{sT2}, s{sT0}, 2\ns_add_u32 s{sRB}, s{sRB}, s{sT2}\ns_and_b32 s{sN}, s{sT1}, 7")
        a(f"v_lshlrev_b32 v{vL16}, 4, v{vL}")
        a("s_waitcnt lgkmcnt(0)")
        for d, p, n in ((SX,64,2048*1024),(SQ,66,512*3072),(SWO,68,512*1024),(S1,72,512*3584),(SB1,74,3584),(SW2,76,1792*1024),
                        (SB2,78,1024),(SOUT,80,2048*1024),(SDBG,82,256),(SWS,84,WS_SIZE)):
            a(f"s_mov_b32 s{d}, s{p}\ns_mov_b32 s{d+1}, s{p+1}\ns_mov_b32 s{d+2}, {n}\ns_mov_b32 s{d+3}, 0x00020000")
        if g.stamps:
            a(f"v_mov_b32 v{vSTASH}, 0\nv_writelane_b32 v{vSTASH}, s{98 if STAMPS == 1 else 96}, 0")
    def wdma_voff(g, dst, stride, t0, t1):
        a = g.a
        a(f"v_lshrrev_b32 v{t0}, 3, v{vL}\nv_mul_u32_u24 v{dst}, {stride}, v{t0}")
        a(f"v_lshrrev_b32 v{t0}, 2, v{vL}\nv_and_b32 v{t0}, 4, v{t0}\nv_and_b32 v{t1}, 7, v{vL}\nv_xor_b32 v{t0}, v{t0}, v{t1}")
        a(f"v_lshl_add_u32 v{dst}, v{t0}, 4, v{dst}")
    def tr_inrow(g, dst, t0, t1):
        a = g.a
        a(f"v_and_b32 v{dst}, 16, v{vL}\nv_lshlrev_b32 v{dst}, 1, v{dst}\nv_and_b32 v{t0}, 3, v{vL}\nv_lshl_add_u32 v{dst}, v{t0}, 3, v{dst}")
        a(f"v_and_b32 v{t0}, 8, v{vL}\nv_lshl_add_u32 v{dst}, v{t0}, 3, v{dst}")
        a(f"v_bfe_u32 v{t0}, v{vL}, 2, 2\nv_lshl_add_u32 v{dst}, v{t0}, 7, v{dst}")
    def tables(g, stride, kcs):
        for kc in kcs:
            g.a(f"s_add_u32 s{sT0}, s{sROT}, {kc}\ns_and_b32 s{sT0}, s{sT0}, 7\ns_lshl_b32 s{sT1}, s{sT0}, 7\ns_add_u32 s{sTX+kc}, s{sXO}, s{sT1}")
            g.a(f"s_mul_i32 s{sT1}, s{sT0}, {64*stride}\ns_add_u32 s{sTW+kc}, s{sWO_}, s{sT1}")
    def issue(g, p, al, u):
        k = u[0]; b = al.base(u)
        if k == "X":
            p(f"s_add_u32 m0, s{sW2K}, {b}")
            p.vmem(f"buffer_load_dwordx4 v{vX0}, {srd(SX)}, s{sTX+u[1]} offen lds", u)
            p.vmem(f"buffer_load_dwordx4 v{vX1}, {srd(SX)}, s{sTX+u[1]} offen offset:1024 lds", u)
        elif k == "W":
            p(f"s_add_u32 m0, s{sW1K}, {b}\ns_add_u32 s{sT0}, s{sTW+u[2]}, {u[1]*128}")
            p.vmem(f"buffer_load_dwordx4 v{vWd}, {srd(S1)}, s{sT0} offen lds", u)
        elif k == "KV":
            p(f"s_add_u32 m0, s{sW2K}, {b}\ns_add_u32 s{sT0}, s{sTW+u[1]}, 1024")
            p.vmem(f"buffer_load_dwordx4 v{vWd}, {srd(SQ)}, s{sT0} offen lds", u)
            p.vmem(f"buffer_load_dwordx4 v{vWd}, {srd(SQ)}, s{sT0} offen offset:1024 lds", u)
        elif k == "Q":
            p(f"s_add_u32 m0, s{sW1K}, {b}")
            p.vmem(f"buffer_load_dwordx4 v{vWd}, {srd(SQ)}, s{sTW+u[1]} offen lds", u)
        elif k == "Hh":
            p(f"s_add_u32 m0, s{sW1K}, {b}\ns_add_u32 s{sT0}, s{sROT}, s{sC}\ns_add_u32 s{sT0}, s{sT0}, {2*u[1]}\ns_and_b32 s{sT0}, s{sT0}, 7")
            p(f"s_mul_i32 s{sT0}, s{sT0}, {64*3584}\ns_add_u32 s{sT0}, s{sT0}, s{sWO2}")
            p.vmem(f"buffer_load_dwordx4 v{vHd}, {srd(S1)}, s{sT0} offen lds", u)
        elif k == "B":
            g.issue_B(p, u[1], b)
    USZ = {"X":2, "W":1, "KV":2, "Q":1, "Hh":1, "B":2}
    PH = {"X": [2,5,8,11,14,17,0,11], "W": [4,7,10,13,16,4,10,13]}
    PA = {"X": [0,6,10,14,4,2,12,16], "KV": [2,8,12,16,0,10,14,4]}
    def pref(g, u):
        k = u[0]
        if k == "B": return [2*u[1]]
        if k == "X": return [(g.PA if g.atype else g.PH)["X"][u[1]]]
        if k == "KV": return [g.PA["KV"][u[1]]]
        if k == "W": return [g.PH["W"][u[2]]] if u[1] == 0 else ([2,3,5,6,7,8,9,4] if u[1] == 1 else [14,15,16,17,10,11,12,13])
        if k == "Hh": return [6,7,8,9]
        if k == "Q": return list(range(10, 18))
    def plan(g, al, queue, limit=99):
        out = []; blocked = set()
        for u in list(queue):
            n = g.USZ[u[0]]
            if n > limit: break
            cand = [c for c in g.pref(u) if not any(q in blocked for q in range(c, c+n))]
            if al.get(u, n, cand) is None:
                if u[0] == "B": break
                pf = g.pref(u)
                for c in pf: blocked.update(range(c, c+n))
                continue
            out.append(u); queue.remove(u); limit -= n
        return out
    def p1_setup(g):
        a = g.a; t0, t1 = vT, vT+1
        a(f"v_lshrrev_b32 v{t0}, 4, v{vL}\nv_and_b32 v{t1}, 7, v{vL}\nv_xor_b32 v{t0}, v{t0}, v{t1}\nv_lshlrev_b32 v{t0}, 4, v{t0}")
        a(f"v_lshrrev_b32 v{t1}, 3, v{vL}\nv_lshl_add_u32 v{vX0}, v{t1}, 10, v{t0}")
        a(f"v_xor_b32 v{vX1}, 64, v{vX0}\nv_add_u32 v{vX1}, 7168, v{vX1}")
        a(f"s_lshl_b32 s{sXO}, s{sI}, 17\ns_lshl_b32 s{sT0}, s{sW}, 14\ns_add_u32 s{sXO}, s{sXO}, s{sT0}")
    def p1_setup2(g, atype):
        a = g.a; t0, t1, t2 = vT, vT+1, vT+2
        a(f"v_and_b32 v{t0}, 31, v{vL}\nv_lshlrev_b32 v{t1}, 7, v{t0}")
        a(f"v_bfe_u32 v{t0}, v{vL}, 1, 3\nv_lshrrev_b32 v{t2}, 5, v{vL}\nv_xor_b32 v{t0}, v{t0}, v{t2}")
        a(f"v_lshl_add_u32 v{t1}, v{t0}, 4, v{t1}\ns_lshl_b32 s{sT0}, s{sR}, 12\nv_add_u32 v{t1}, s{sT0}, v{t1}")
        a(f"s_lshl_b32 s{sT0}, s{sC}, 6\nv_xor_b32 v{vXA}, s{sT0}, v{t1}")
        for kk in range(1, 4): a(f"v_xor_b32 v{vXA+kk}, {kk*32}, v{vXA}")
        g.tr_inrow(t1, t0, t2)
        a(f"v_xor_b32 v{t1}, s{sT0}, v{t1}")
        a(f"v_lshrrev_b32 v{t2}, 5, v{vL}")
        for (ra, rb, rc, ps) in ((vWa, vWb, vWc, 1024),) + (((vKa, vKb, vKc, 2048),) if atype else ()):
            sh = 10 if ps == 1024 else 11
            a(f"v_lshl_add_u32 v{t0}, v{t2}, {sh}, v{t1}")
            a(f"s_lshl_b32 s{sT1}, s{sC}, {sh+2}\nv_add_u32 v{ra}, s{sT1}, v{t0}\nv_xor_b32 v{rb}, {4*ps}, v{ra}")
            a(f"s_lshl_b32 s{sT1}, s{sR}, {sh+1}\nv_add_u32 v{rc}, s{sT1}, v{t0}")
        if atype:
            a(f"v_and_b32 v{vHa}, 16, v{vL}\nv_lshlrev_b32 v{vHa}, 1, v{vHa}\nv_and_b32 v{t0}, 3, v{vL}\nv_lshl_add_u32 v{vHa}, v{t0}, 3, v{vHa}")
            a(f"v_bfe_u32 v{t0}, v{vL}, 2, 2\nv_lshl_add_u32 v{vHa}, v{t0}, 6, v{vHa}\nv_lshl_add_u32 v{vHa}, v{t2}, 9, v{vHa}")
            a(f"s_lshl_b32 s{sT1}, s{sR}, 10\nv_add_u32 v{vHc}, s{sT1}, v{vHa}")
        a(f"v_and_b32 v{t0}, 31, v{vL}\nv_cmp_eq_u32 vcc, 0, v{t0}\nv_cmp_eq_u32 s[{sT0}:{sT0+1}], 20, v{t0}\ns_or_b64 vcc, vcc, s[{sT0}:{sT0+1}]")
        a(f"v_mov_b32 v{t1}, 0x3f803f80\nv_cndmask_b32 v{vSEL}, 0, v{t1}, vcc")
        for k in range(1, 4): a(f"v_mov_b32 v{vSEL+k}, v{vSEL}")
        a(f"v_lshlrev_b32 v{vCSr}, 4, v{t0}\ns_lshl_b32 s{sT0}, s{sC}, 9\ns_add_u32 s{sT0}, s{sT0}, {SC_CS}\nv_add_u32 v{vCSr}, s{sT0}, v{vCSr}")
        a(f"s_lshl_b32 s{sT0}, s{sR}, 2\nv_add_u32 v{vCSa}, s{sT0}, v{vCSr}")
        a(f"v_mov_b32 v{vS}, 0\nv_mov_b32 v{vQ}, 0")
    def stats_ops(g, regs):
        ops = []
        for k, r in enumerate(regs):
            lo, hi = vT + 2*(k & 3), vT + 2*(k & 3) + 1
            ops += [f"v_lshlrev_b32 v{lo}, 16, v{r}", f"v_and_b32 v{hi}, 0xffff0000, v{r}",
                    f"v_add_f32 v{vS}, v{vS}, v{lo}", f"v_fmac_f32 v{vQ}, v{lo}, v{lo}",
                    f"v_add_f32 v{vS}, v{vS}, v{hi}", f"v_fmac_f32 v{vQ}, v{hi}, v{hi}"]
        return ops
    def cs_write(g, p, acc, tileidx):
        p(f"s_mov_b32 exec_hi, 0")
        p.lds(f"ds_write_b32 v{vCSa}, v{acc} offset:{int(tileidx*1024)}", "csw")
        p(f"s_mov_b32 exec_hi, -1")
    def i0(g, p, al, queue, atype):
        nt = 2 if atype else 1
        ra, rb, rc, ps = (vKa, vKb, vKc, 2048) if atype else (vWa, vWb, vWc, 1024)
        for kc in range(8):
            wu = ("KV", kc) if atype else ("W", 0, kc)
            p.wait_lg0()
            p.wait_vm(("X", kc)); p.wait_vm(wu)
            p("s_barrier")
            g.stamp(p, 1 + kc)
            p(f"s_cmp_eq_u32 s{sC}, 1")
            xb, wb = al.base(("X", kc)), al.base(wu)
            def rdw(kk, t):
                f = vF + 4*((kk*nt + t) & 3)
                for n in range(2):
                    p.tr(f + 2*n, ra if kk < 2 else rb, wb + (kk & 1)*2*ps + n*512 + t*1024, ("w", kk, t))
            p.rd128(vXF + 16*kc, vXA, xb, ("x", 0))
            for t in range(nt): rdw(0, t)
            p.rd128(vXF + 16*kc + 4, vXA+1, xb, ("x", 1))
            for t in range(nt): rdw(1, t)
            p.rd128(vXF + 16*kc + 8, vXA+2, xb, ("x", 2))
            p.rd128(vXF + 16*kc + 12, vXA+3, xb, ("x", 3))
            if nt == 1: rdw(2, 0); rdw(3, 0)
            for t in range(nt):
                for n in range(2): p.tr(vT + 8 + 4*t + 2*n, rc, wb + n*512 + t*1024, ("c", t))
            if kc > 0:
                al.rel(("X", kc-1)); al.rel(("KV", kc-1) if atype else ("W", 0, kc-1))
            newu = g.plan(al, queue, LIM_A if atype else LIM_H)
            lab = f"L_{'A' if atype else 'H'}i{kc}"
            if g.fused and kc == 4: g.nonce_load(p)
            if newu:
                p(f"s_cbranch_scc1 {lab}a"); vm0 = list(p.vm)
                for u in newu: g.issue(p, al, u)
                p(f"{lab}a:")
            st = g.stats_ops(range(vXF + 16*kc, vXF + 16*kc + 8))
            for kk in range(4):
                ks = 4*kc + kk
                for t in range(nt):
                    p.wait_lg(("x", kk)); p.wait_lg(("w", kk, t))
                    f = vF + 4*((kk*nt + t) & 3)
                    x = vXF + 4*ks
                    c = 0 if ks == 0 else ACC[t]
                    p(mfma32(ACC[t], x, f, c) if atype else mfma32(ACC[t], f, x, c))
                    if nt == 2 and kk < 2: rdw(kk+2, t)
                if kk >= 1 or True:
                    if kk == 0: chunk = st[:24]
                    elif kk == 1: chunk = st[24:36]
                    elif kk == 2: chunk = st[36:]
                    else: chunk = []
                    for o in chunk: p(o)
            for t in range(nt):
                p.wait_lg(("c", t))
                cs = (vCS0, vCS1)[t]
                p(mfma16(cs, vSEL, vT + 8 + 4*t, 0 if kc == 0 else cs))
            if newu:
                p(f"s_cmp_eq_u32 s{sC}, 0\ns_cbranch_scc1 {lab}b"); vm1 = list(p.vm)
                for u in newu: g.issue(p, al, u)
                p(f"{lab}b:"); p.vm = vm1
        t0 = vT
        p(f"v_and_b32 v{t0}, 31, v{vL}\nv_lshlrev_b32 v{t0}, 5, v{t0}\ns_lshl_b32 s{sT0}, s{sR}, 10\ns_add_u32 s{sT0}, s{sT0}, {SC_STAT}\nv_add_u32 v{t0}, s{sT0}, v{t0}")
        p(f"v_lshrrev_b32 v{t0+1}, 5, v{vL}\nv_lshl_add_u32 v{t0+1}, v{t0+1}, 3, v{t0}\ns_lshl_b32 s{sT0}, s{sC}, 4\nv_add_u32 v{t0+1}, s{sT0}, v{t0+1}")
        p.lds(f"ds_write_b64 v{t0+1}, v[{vS}:{vQ}]", "stw")
        for t in range(nt): g.cs_write(p, (vCS0, vCS1)[t], t)
        g.stat_addr = t0
    def stats_fin(g, p, atype):
        t = vT + 2
        p.lds(f"ds_read_b128 {vr(t)}, v{vT}", "st"); p.lds(f"ds_read_b128 {vr(t+4)}, v{vT} offset:16", "st")
        p.wait_lg0()
        p(f"v_add_f32 v{t}, v{t}, v{t+2}\nv_add_f32 v{t+4}, v{t+4}, v{t+6}\nv_add_f32 v{t+1}, v{t+1}, v{t+3}\nv_add_f32 v{t+5}, v{t+5}, v{t+7}")
        p(f"v_add_f32 v{t}, v{t}, v{t+4}\nv_add_f32 v{t+1}, v{t+1}, v{t+5}")
        p(f"v_mul_f32 v{t}, {f2u(-1/512)}, v{t}")
        p(f"v_mul_f32 v{t+1}, {f2u(1/512)}, v{t+1}\nv_fma_f32 v{t+1}, -v{t}, v{t}, v{t+1}")
        p(f"v_max_f32 v{t+1}, 0, v{t+1}\nv_add_f32 v{t+1}, {f2u(1e-5)}, v{t+1}")
        p(f"v_sqrt_f32 v{vIRS}, v{t+1}\nv_rcp_f32 v{vRS}, v{vIRS}")
        p(f"v_mul_f32 v{vRL}, {f2u(LOG2E)}, v{vRS}\nv_mul_f32 v{vC0}, {f2u(GC0)}, v{vRS}\nv_mul_f32 v{vC1}, v{vRS}, v{vRS}")
        p(f"v_mul_f32 v{vC1}, v{vC1}, v{vRS}\nv_mul_f32 v{vC1}, {f2u(GC1)}, v{vC1}")
        p(f"v_cvt_pk_bf16_f32 v{t+2}, v{t}, v{vIRS}")
        p(f"v_lshlrev_b32 v{t+3}, 16, v{t+2}\nv_and_b32 v{t+4}, 0xffff0000, v{t+2}")
        p(f"v_sub_f32 v{t+5}, v{t}, v{t+3}\nv_sub_f32 v{t+6}, v{vIRS}, v{t+4}")
        p(f"v_cvt_pk_bf16_f32 v{t+5}, v{t+3}, v{t+5}\nv_cvt_pk_bf16_f32 v{t+6}, v{t+6}, 0")
        p(f"v_cmp_gt_u32 vcc, 32, v{vL}")
        p(f"v_cndmask_b32 v{vXE}, 0, v{t+5}, vcc\nv_cndmask_b32 v{vXE+1}, 0, v{t+2}, vcc\nv_cndmask_b32 v{vXE+2}, 0, v{t+6}, vcc\nv_mov_b32 v{vXE+3}, 0")
        if atype:
            p(f"v_and_b32 v{t}, 31, v{vL}\nv_lshlrev_b32 v{t}, 2, v{t}\ns_lshl_b32 s{sT0}, s{sR}, 7\ns_add_u32 s{sT0}, s{sT0}, {SC_RS}\nv_add_u32 v{t}, s{sT0}, v{t}")
            p.lds(f"ds_write_b32 v{t}, v{vRL}", "rsw")
    def ext(g, p, acc, csoff, bias, transposed):
        t = vT
        p.lds(f"ds_read_b128 {vr(t)}, v{vCSr} offset:{csoff}", "cs"); p.wait_lg("cs")
        p(f"v_add_f32 v{t}, v{t}, v{t+1}\nv_add_f32 v{t+2}, v{t+2}, v{t+3}\nv_add_f32 v{t}, v{t}, v{t+2}")
        p(f"v_cvt_pk_bf16_f32 v{t+4}, v{t}, v{t}\nv_lshlrev_b32 v{t+1}, 16, v{t+4}\nv_sub_f32 v{t}, v{t}, v{t+1}")
        if bias is not None:
            p(f"v_lshlrev_b32 v{t+1}, 16, v{bias}\nv_cvt_pk_bf16_f32 v{t+5}, v{t}, v{t+1}\nv_mov_b32 v{t+6}, v{bias}")
        else:
            p(f"v_cvt_pk_bf16_f32 v{t+5}, v{t}, 0\nv_mov_b32 v{t+6}, 0")
        p(f"v_mov_b32 v{t+7}, 0")
        p(mfma32(acc, t+4, vXE, acc) if transposed else mfma32(acc, vXE, t+4, acc))
    def store_frags(g, p, src, soff):
        p(f"s_add_u32 s{sT0}, s{sHF}, {soff}")
        p.vmem(f"buffer_store_dwordx4 {vr(src)}, v{vL16}, {srd(SWS)}, s{sT0} offen{g.sc}", "hst")
        p.vmem(f"buffer_store_dwordx4 {vr(src+4)}, v{vL16}, {srd(SWS)}, s{sT0} offen offset:1024{g.sc}", "hst")
    def epi_gelu(g, p, acc, csoff, bias, soff):
        g.ext(p, acc, csoff, bias, True)
        t = vT + 8
        for b in range(2):
            A = [acc + 8*b + k for k in range(8)]; T = [t + k for k in range(8)]
            for x, y in zip(A, T): p(f"v_mul_f32 v{y}, v{x}, v{x}")
            for x, y in zip(A, T): p(f"v_fma_f32 v{y}, v{y}, v{vC1}, v{vC0}")
            for x, y in zip(A, T): p(f"v_mul_f32 v{y}, v{y}, v{x}")
            for x, y in zip(A, T): p(f"v_exp_f32 v{y}, v{y}")
            for x, y in zip(A, T): p(f"v_fma_f32 v{y}, v{y}, v{vIRS}, v{vIRS}")
            for x, y in zip(A, T): p(f"v_rcp_f32 v{y}, v{y}")
            for x, y in zip(A, T): p(f"v_mul_f32 v{y}, v{y}, v{x}")
            for k in range(4): p(f"v_cvt_pk_bf16_f32 v{vT + 4*b + k}, v{T[2*k]}, v{T[2*k+1]}")
        g.store_frags(p, vT, soff)
    def phi(g, p, acc, scale, dst, cl, ce):
        t = vT + 8
        for b in range(2):
            A = [acc + 8*b + k for k in range(8)]; T = [t + k for k in range(8)]
            for k, x in enumerate(A): p(f"v_mul_f32 v{x}, v{x}, v{scale(8*b+k)}")
            for x, y in zip(A, T): p(f"v_exp_f32 v{y}, v{x} clamp")
            for x in A: p(f"v_max_f32 v{x}, 0, v{x}")
            for x in A: p(f"v_fma_f32 v{x}, v{x}, v{cl}, v{ce}")
            for x, y in zip(A, T): p(f"v_add_f32 v{x}, v{x}, v{y}")
            for k in range(4): p(f"v_cvt_pk_bf16_f32 v{dst + 4*b + k}, v{A[2*k]}, v{A[2*k+1]}")
    def epi_q(g, p, acc, csoff, soff):
        g.ext(p, acc, csoff, None, True)
        p(f"v_mov_b32 v{vCS0}, {f2u(LN2)}\nv_mov_b32 v{vCS0+1}, {f2u(1e-6)}")
        g.phi(p, acc, lambda k: vRL, vT, vCS0, vCS0+1)
        g.store_frags(p, vT, soff)
    def epi_kv(g, p):
        K, V = ACC[0], ACC[1]
        g.ext(p, K, 0, None, False)
        g.ext(p, V, 1024, None, False)
        t = vCS0 + 2
        p(f"v_lshrrev_b32 v{t}, 5, v{vL}\nv_lshlrev_b32 v{t}, 4, v{t}\ns_lshl_b32 s{sT0}, s{sR}, 7\ns_add_u32 s{sT0}, s{sT0}, {SC_RS}\nv_add_u32 v{t}, s{sT0}, v{t}")
        for q in range(4): p.lds(f"ds_read_b128 {vr(vF+4*q)}, v{t} offset:{32*q}", "rl")
        p(f"v_mov_b32 v{vCS0}, {f2u(LN2)}\nv_mov_b32 v{vCS0+1}, {f2u(1e-6)}")
        for k in range(4): p(f"v_mov_b32 v{vCS1+k}, 0x3f803f80")
        p.wait_lg("rl")
        g.phi(p, K, lambda k: vF + k, vT, vCS0, vCS0+1)
        for k in range(16): p(f"v_mul_f32 v{V+k}, v{V+k}, v{vF+k}")
        for k in range(8): p(f"v_cvt_pk_bf16_f32 v{vT+8+k}, v{V+2*k}, v{V+2*k+1}")
        p(mfma32(K, vT, vT+8, 0)); p(mfma32(V, vT, vCS1, 0))
        p(mfma32(K, vT+4, vT+12, K)); p(mfma32(V, vT+4, vCS1, V))
        p(f"v_and_b32 v{t}, 16, v{vL}\nv_cmp_eq_u32 vcc, 0, v{t}\nv_lshlrev_b32 v{t}, 3, v{vL}")
        for k in range(8): p(f"v_cndmask_b32 v{K+k}, v{V+k}, v{K+k}, vcc")
        for k in range(8, 16): p(f"v_cndmask_b32 v{K+k}, v{K+k}, v{V+k}, vcc")
        for rp in range(8):
            p(f"s_add_u32 s{sT0}, s{sKVP}, {rp*32768}")
            p.vmem(f"buffer_store_dwordx2 {vr(K+2*rp,2)}, v{t}, {srd(SWS)}, s{sT0} offen{g.sc}", "kvst")
    def mm_pass(g, p, al, acc, kind, s, cstile):
        def addr(ks, n):
            kc, kk = ks >> 2, ks & 3
            if kind == "Hh":
                tk = ks ^ 2
                return vHa, al.base(("Hh", tk >> 3)) + (tk & 7)*1024 + n*256
            u = ("W", s, kc) if kind == "W" else ("Q", kc)
            return (vWa if kk < 2 else vWb), al.base(u) + (kk & 1)*2048 + n*512
        def caddr(kc, n):
            if kind == "Hh": return vHc, al.base(("Hh", kc >> 1)) + (kc & 1)*4096 + n*256
            u = ("W", s, kc) if kind == "W" else ("Q", kc)
            return vWc, al.base(u) + n*512
        p("s_setprio 2")
        D = 4
        def rd(ks):
            for n in range(2):
                r, o = addr(ks, n); p.tr(vF + 4*(ks & 3) + 2*n, r, o, ("w", ks))
        def rdc(kc):
            for n in range(2):
                r, o = caddr(kc, n); p.tr(vT + 8 + 4*(kc & 1) + 2*n, r, o, ("c", kc))
        for ks in range(D-1): rd(ks)
        rdc(0)
        for ks in range(32):
            if ks + D - 1 < 32: rd(ks + D - 1)
            p.wait_lg(("w", ks))
            p(mfma32(acc, vF + 4*(ks & 3), vXF + 4*ks, 0 if ks == 0 else acc))
            if ks & 3 == 1:
                kc = ks >> 2
                p.wait_lg(("c", kc))
                p(mfma16(vCS0, vSEL, vT + 8 + 4*(kc & 1), 0 if kc == 0 else vCS0))
                if kc < 7: rdc(kc + 1)
        g.cs_write(p, vCS0, cstile)
        p("s_setprio 0")
        g.flush(p, al)
    def bar(g, paths, al, queue, waits, frees):
        for f in frees: al.rel(f)
        newu = g.plan(al, queue)
        g.nbar += 1; sid = g.nbar
        def go(p, now=True):
            p.wait_lg0()
            g.stamp(p, 2*sid - 9)
            for w in waits: p.wait_vm(w)
            p("s_barrier")
            g.stamp(p, 2*sid - 8)
            p.later = list(newu)
            if now: g.flush(p, al)
        return go
    def flush(g, p, al):
        for u in getattr(p, "later", []): g.issue(p, al, u)
        p.later = []
    def role_H(g, after):
        a = g.a; p = Path(a); al = Alloc()
        a("L_roleH:"); g.nbar = 8; g.atype = False
        g.wdma_voff(vWd, 3584, vT, vT+1)
        a(f"s_mul_i32 s{sWO_}, s{sW}, {8*3584}\ns_sub_u32 s{sT}, s{sT}, 8\ns_mul_i32 s{sT0}, s{sT}, 384\ns_add_u32 s{sWO_}, s{sWO_}, s{sT0}")
        queue = []
        for kc in range(8): queue += [("X", kc), ("W", 0, kc)]
        for s in (1, 2): queue += [("W", s, kc) for kc in range(8)]
        if g.fused: queue += [("B", u) for u in range(9)]
        g.stamp(p, 39)
        g.tables(3584, range(2))
        for u in g.plan(al, queue, PRO_H): g.issue(p, al, u)
        g.stamp(p, 40)
        g.tables(3584, range(2, 8))
        g.early(p)
        a(f"v_and_b32 v{vT}, 31, v{vL}\nv_lshlrev_b32 v{vT}, 1, v{vT}\ns_lshl_b32 s{sT1}, s{sC}, 6\ns_add_u32 s{sT0}, s{sT0}, s{sT1}")
        a(f"s_mul_i32 s{sT0}, s{sT}, 384\ns_add_u32 s{sT0}, s{sT0}, s{sT1}")
        for s in range(3): p.vmem(f"buffer_load_ushort v{vB1+s}, v{vT}, {srd(SB1)}, s{sT0} offen offset:{128*s}", "b1")
        a(f"s_lshl_b32 s{sHF}, s{sI}, 2\ns_add_u32 s{sHF}, s{sHF}, s{sR}\ns_mul_i32 s{sHF}, s{sHF}, {HF_RT}")
        a(f"s_mul_i32 s{sT0}, s{sT}, {12*1024}\ns_add_u32 s{sHF}, s{sHF}, s{sT0}\ns_lshl_b32 s{sT0}, s{sC}, 11\ns_add_u32 s{sHF}, s{sHF}, s{sT0}")
        g.p1_setup2(False)
        g.stamp(p, 41)
        g.i0(p, al, queue, False)
        S = lambda s: [("W", s, kc) for kc in range(8)]
        e0 = g.bar(None, al, queue, ["b1"] + S(1), [("X", 7), ("W", 0, 7)])
        g.nonce_pub(p)
        e0(p, False); g.stats_fin(p, False)
        b12 = g.bar(None, al, queue, [], [])
        b23 = g.bar(None, al, queue, S(2), S(1))
        b34 = g.bar(None, al, queue, [], [])
        b45 = g.bar(None, al, queue, [], S(2))
        a(f"s_cmp_eq_u32 s{sC}, 1\ns_cbranch_scc1 L_H1")
        q = p.fork()
        g.flush(p, al)
        g.epi_gelu(p, ACC[0], 0, vB1, 0); b12(p, False)
        g.mm_pass(p, al, ACC[1], "W", 1, 1); b23(p)
        g.epi_gelu(p, ACC[1], 1024, vB1+1, 4096); b34(p, False)
        g.mm_pass(p, al, ACC[0], "W", 2, 2); b45(p, False)
        g.epi_gelu(p, ACC[0], 2048, vB1+2, 8192)
        after(p, al, queue, "H0")
        a("L_H1:"); p = q
        g.mm_pass(p, al, ACC[1], "W", 1, 1); b12(p)
        g.epi_gelu(p, ACC[0], 0, vB1, 0); g.epi_gelu(p, ACC[1], 1024, vB1+1, 4096); b23(p, False)
        g.mm_pass(p, al, ACC[0], "W", 2, 2); b34(p)
        g.epi_gelu(p, ACC[0], 2048, vB1+2, 8192); g.flag_h(p); b45(p)
        after(p, al, queue, "H1")
    def role_A(g, after):
        a = g.a; p = Path(a); al = Alloc()
        a("L_roleA:"); g.nbar = 8; g.atype = True
        g.wdma_voff(vWd, 3072, vT, vT+1)
        a(f"s_mul_i32 s{sWO_}, s{sW}, {8*3072}\ns_lshl_b32 s{sT0}, s{sT}, 7\ns_add_u32 s{sWO_}, s{sWO_}, s{sT0}")
        queue = []
        for kc in range(8): queue += [("X", kc), ("KV", kc)]
        queue += [("Hh", k) for k in range(4)] + [("Q", kc) for kc in range(8)]
        if g.fused: queue += [("B", u) for u in range(9)]
        g.stamp(p, 39)
        g.tables(3072, range(2))
        for u in g.plan(al, queue, PRO_A): g.issue(p, al, u)
        g.stamp(p, 40)
        g.tables(3072, range(2, 8))
        g.early(p)
        a(f"v_lshrrev_b32 v{vT}, 2, v{vL}\nv_mul_u32_u24 v{vHd}, 3584, v{vT}\nv_and_b32 v{vT}, 3, v{vL}\nv_lshl_add_u32 v{vHd}, v{vT}, 4, v{vHd}")
        a(f"s_lshl_b32 s{sT0}, s{sT}, 6\ns_add_u32 s{sT0}, s{sT0}, 3072\ns_mul_i32 s{sWO2}, s{sR}, {16*3584}\ns_add_u32 s{sWO2}, s{sWO2}, s{sT0}")
        a(f"v_and_b32 v{vT}, 31, v{vL}\nv_lshlrev_b32 v{vT}, 1, v{vT}")
        p.vmem(f"buffer_load_ushort v{vB1}, v{vT}, {srd(SB1)}, s{sT0} offen", "b1")
        a(f"s_lshl_b32 s{sHF}, s{sI}, 2\ns_add_u32 s{sHF}, s{sHF}, s{sR}\ns_lshl_b32 s{sKVP}, s{sHF}, 9\ns_mul_i32 s{sHF}, s{sHF}, {HF_RT}")
        a(f"s_lshl_b32 s{sT0}, s{sT}, 1\ns_add_u32 s{sT0}, s{sT0}, s{sC}\ns_lshl_b32 s{sT0}, s{sT0}, 18\ns_add_u32 s{sKVP}, s{sKVP}, s{sT0}\ns_add_u32 s{sKVP}, s{sKVP}, {WS_KVP}")
        a(f"s_lshl_b32 s{sT0}, s{sT}, 11\ns_add_u32 s{sHF}, s{sHF}, s{sT0}")
        g.p1_setup2(True)
        g.stamp(p, 41)
        g.i0(p, al, queue, True)
        HH = [("Hh", k) for k in range(4)]; QQ = [("Q", kc) for kc in range(8)]
        e0 = g.bar(None, al, queue, ["b1"] + HH, [("X", 7), ("KV", 7)])
        g.nonce_pub(p)
        e0(p, False); g.stats_fin(p, True)
        b12 = g.bar(None, al, queue, QQ, HH)
        b23 = g.bar(None, al, queue, [], [])
        b34 = g.bar(None, al, queue, [], QQ)
        def qoff(p):
            p(f"s_lshl_b32 s{sT0}, s{sT}, 11\ns_add_u32 s{sHF}, s{sHF}, s{sT0}\ns_lshl_b32 s{sT0}, s{sC}, 11\ns_add_u32 s{sHF}, s{sHF}, s{sT0}")
        g.flush(p, al)
        a(f"s_cmp_eq_u32 s{sC}, 1\ns_cbranch_scc1 L_A1")
        q = p.fork()
        p.wait_lg0()
        g.epi_kv(p); b12(p, False)
        g.mm_pass(p, al, ACC[2], "Q", 0, 2); g.flag_kv(p); b23(p)
        qoff(p); g.epi_q(p, ACC[2], 2048, 112*1024); g.flag_h(p); b34(p)
        after(p, al, queue, "A0")
        a("L_A1:"); p = q
        g.mm_pass(p, al, ACC[2], "Hh", 0, 2.5); b12(p, False)
        g.epi_kv(p); g.flush(p, al); g.epi_gelu(p, ACC[2], 2560, vB1, 96*1024); g.flag_kv(p); b23(p, False)
        g.mm_pass(p, al, ACC[2], "Q", 0, 2); b34(p, False)
        qoff(p); g.epi_q(p, ACC[2], 2048, 112*1024)
        after(p, al, queue, "A1")
    def early(g, p):
        if not g.fused: return
        g.p2_setup_dma()
        p(f"s_or_b32 s{sT0}, s2, s{sW}\ns_cmp_lg_u32 s{sT0}, 0\ns_cbranch_scc1 L_nn{int(g.atype)}")
        p(f"s_memrealtime s[{sT0}:{sT0+1}]\ns_waitcnt lgkmcnt(0)\ns_or_b32 s{sT0}, s{sT0}, 1")
        p(f"v_mov_b32 v{vT}, s{sT0}\nv_mov_b32 v{vT+1}, s{sT0+1}\nv_mov_b32 v{vT+2}, 0")
        p(f"buffer_store_dwordx2 v[{vT}:{vT+1}], v{vT+2}, {srd(SDBG)}, 0 offen sc1")
        p(f"L_nn{int(g.atype)}:")
    def nonce_load(g, p):
        p(f"v_mov_b32 v{vNON+2}, 0")
        p.vmem(f"buffer_load_dwordx2 v[{vNON}:{vNON+1}], v{vNON+2}, {srd(SDBG)}, 0 offen sc1", "non")
    def nonce_pub(g, p):
        if not g.fused: return
        L = f"L_np{int(g.atype)}"
        p.wait_vm("non")
        p(f"s_mov_b32 s{sT1}, {POLLMAX}")
        p(f"{L}:\nv_readfirstlane_b32 s{sT0}, v{vNON}\ns_cmp_lg_u32 s{sT0}, 0\ns_cbranch_scc1 {L}x")
        p(f"s_sleep 2\nbuffer_load_dwordx2 v[{vNON}:{vNON+1}], v{vNON+2}, {srd(SDBG)}, 0 offen sc1\ns_waitcnt vmcnt(0)")
        p(f"s_sub_u32 s{sT1}, s{sT1}, 1\ns_cmp_lg_u32 s{sT1}, 0\ns_cbranch_scc1 {L}\n{L}x:")
        p(f"v_readfirstlane_b32 s{sNON}, v{vNON}\nv_readfirstlane_b32 s{sNON+1}, v{vNON+1}")
    def put_flag(g, p, tag, soff_code):
        p.wait_vm(tag)
        p(soff_code)
        p(f"v_mov_b32 v{vT}, s{sNON}\nv_mov_b32 v{vT+1}, s{sNON+1}\nv_mov_b32 v{vT+2}, 0\ns_mov_b64 exec, 1")
        p.vmem(f"buffer_store_dwordx2 v[{vT}:{vT+1}], v{vT+2}, {srd(SWS)}, s{sT0} offen sc1", "flag")
        p("s_mov_b64 exec, -1")
    def flag_h(g, p):
        if not g.fused: return
        g.put_flag(p, "hst", f"s_lshl_b32 s{sT0}, s{sI}, 4\ns_add_u32 s{sT0}, s{sT0}, s{sT}\ns_lshl_b32 s{sT0}, s{sT0}, 3\ns_add_u32 s{sT0}, s{sT0}, s{sW}\n"
                   f"s_lshl_b32 s{sT0}, s{sT0}, 3\ns_add_u32 s{sT0}, s{sT0}, {WS_FLG + (0 if g.atype else 512)}")
    def flag_kv(g, p):
        if not g.fused: return
        g.put_flag(p, "kvst", f"s_lshl_b32 s{sT0}, s{sT}, 1\ns_add_u32 s{sT0}, s{sT0}, s{sC}\ns_lshl_b32 s{sT0}, s{sT0}, 4\ns_add_u32 s{sT0}, s{sT0}, s{sI}\n"
                   f"s_lshl_b32 s{sT0}, s{sT0}, 2\ns_add_u32 s{sT0}, s{sT0}, s{sR}\ns_lshl_b32 s{sT0}, s{sT0}, 3\ns_add_u32 s{sT0}, s{sT0}, {WS_FLG + 16384}")
    def poll(g, p, name, vd, va, sreg, first_issued=False):
        L = f"L_pl{name}"
        ld = f"buffer_load_dwordx2 v[{vd}:{vd+1}], v{va}, {srd(SWS)}, s{sreg} offen sc1"
        if not first_issued: p.vmem(ld, ("pl", name))
        p.wait_vm(("pl", name))
        p(f"s_mov_b32 s{sT1}, {POLLMAX}")
        p(f"{L}:\nv_cmp_ne_u64 vcc, s[{sNON}:{sNON+1}], v[{vd}:{vd+1}]\ns_nop 1\ns_cmp_eq_u64 vcc, 0\ns_cbranch_scc1 {L}x")
        p(f"s_sleep 2\n{ld}\ns_waitcnt vmcnt(0)")
        p(f"s_sub_u32 s{sT1}, s{sT1}, 1\ns_cmp_lg_u32 s{sT1}, 0\ns_cbranch_scc1 {L}\n{L}x:")
    def p2_poll_setup(g, p):
        p(f"v_and_b32 v4, 1, v{vL}\nv_lshlrev_b32 v4, 3, v4\nv_and_b32 v5, 2, v{vL}\nv_lshl_add_u32 v4, v5, 4, v4\nv_and_b32 v5, 15, v{vL}\nv_lshlrev_b32 v5, 3, v5")
        p(f"s_lshr_b32 s{sWO2}, s{sRB}, 1\ns_lshl_b32 s{sWO2}, s{sWO2}, 4\ns_add_u32 s{sWO2}, s{sWO2}, s{sW}\ns_lshl_b32 s{sWO2}, s{sWO2}, 6")
        p(f"s_and_b32 s{sT0}, s{sRB}, 1\ns_lshl_b32 s{sT0}, s{sT0}, 4\ns_add_u32 s{sWO2}, s{sWO2}, s{sT0}\ns_add_u32 s{sWO2}, s{sWO2}, {WS_FLG}\ns_add_u32 s{sWO_}, s{sWO2}, 512")
        p(f"s_lshl_b32 s{sHF}, s{sW}, 7\ns_add_u32 s{sHF}, s{sHF}, {WS_FLG + 24576}")
    def wait_h(g, p): g.poll(p, "h", 2, 4, sWO_)
    def wait_a(g, p): g.poll(p, "a", 2, 4, sWO2)
    def wait_kvf(g, p): g.poll(p, "k", 2, 5, sHF)
    def after_fused(g, p, al, queue, tag):
        assert not queue, queue
        g.flush(p, al)
        if tag in ("H0", "A1"): g.flag_h(p)
        if tag == "A0":
            p(f"s_cmp_lg_u32 s{sW}, 0\ns_cbranch_scc1 L_p2")
            p(f"v_lshlrev_b32 v4, 3, v{vL}\ns_lshl_b32 s{sWO_}, s{sT}, 1\ns_lshr_b32 s{sT0}, s{sI}, 3\ns_add_u32 s{sWO_}, s{sWO_}, s{sT0}\ns_lshl_b32 s{sWO_}, s{sWO_}, 9\ns_add_u32 s{sWO_}, s{sWO_}, {WS_FLG + 16384}")
            g.stamp(p, 30)
            g.poll(p, "r", 2, 4, sWO_)
            g.stamp(p, 31)
            g.kvreduce(p, sI, sT)
            g.put_flag(p, "kvf", f"s_lshl_b32 s{sT0}, s{sT}, 4\ns_add_u32 s{sT0}, s{sT0}, s{sI}\ns_lshl_b32 s{sT0}, s{sT0}, 3\ns_add_u32 s{sT0}, s{sT0}, {WS_FLG + 24576}")
            g.stamp(p, 32)
        order = [x[1] for x in p.vm if isinstance(x, tuple) and x[0] == "B"]
        assert order == sorted(order), order
        p.wait_lg0()
        p("s_branch L_p2")
    def phase1(g, after):
        a = g.a
        g.p1_setup()
        a(f"s_cmp_ge_u32 s{sT}, 8\ns_cbranch_scc1 L_roleH")
        g.role_A(after); g.role_H(after)
    def kvreduce(g, p, si, sj):
        p(f"s_lshl_b32 s{sT0}, s{sj}, 4\ns_add_u32 s{sT0}, s{sT0}, s{si}\ns_lshl_b32 s{sT0}, s{sT0}, 15\ns_add_u32 s{sT0}, s{sT0}, {WS_KVP}")
        for k in range(32):
            if k and k % 4 == 0: p(f"s_add_u32 s{sT0}, s{sT0}, 4096")
            p.vmem(f"buffer_load_dwordx4 {vr(vXF+4*k)}, v{vL16}, {srd(SWS)}, s{sT0} offen offset:{(k&3)*1024}{g.sc}", ("kr", k))
        for k in range(1, 32):
            p.wait_vm(("kr", k))
            for e in range(4): p(f"v_add_f32 v{vXF+e}, v{vXF+e}, v{vXF+4*k+e}")
        t = vT
        for e in range(4): p(f"v_mov_b32 v{t+e}, v{vXF+e}")
        for e in range(4): p(f"v_permlane32_swap_b32 v{t+e}, v{vXF+e}")
        for e in range(4): p(f"v_add_f32 v{t+e}, v{t+e}, v{vXF+e}")
        p(f"v_cmp_gt_u32 vcc, 32, v{vL}\nv_cndmask_b32 v{t}, v{t+2}, v{t}, vcc\nv_cndmask_b32 v{t+1}, v{t+3}, v{t+1}, vcc")
        p(f"s_bfe_u32 s{sT1}, s{si}, 0x10002\nv_bfe_u32 v{t+2}, v{vL}, 3, 1\nv_cmp_eq_u32 vcc, s{sT1}, v{t+2}")
        p(f"v_mov_b32 v{t+3}, {f2u(LN2)}\nv_cndmask_b32 v{t+2}, 1.0, v{t+3}, vcc\nv_mul_f32 v{t}, v{t}, v{t+2}\nv_mul_f32 v{t+1}, v{t+1}, v{t+2}")
        p(f"v_cvt_pk_bf16_f32 v{t}, v{t}, v{t+1}")
        p(f"v_and_b32 v{t+1}, 31, v{vL}\nv_lshlrev_b32 v{t+1}, 5, v{t+1}\nv_lshrrev_b32 v{t+2}, 5, v{vL}\nv_lshl_add_u32 v{t+1}, v{t+2}, 4, v{t+1}")
        p(f"s_lshl_b32 s{sT0}, s{sj}, 2\ns_lshr_b32 s{sT1}, s{si}, 2\ns_add_u32 s{sT0}, s{sT0}, s{sT1}\ns_lshl_b32 s{sT0}, s{sT0}, 10")
        p(f"s_and_b32 s{sT1}, s{si}, 3\ns_lshl_b32 s{sT1}, s{sT1}, 2\ns_add_u32 s{sT0}, s{sT0}, s{sT1}\ns_add_u32 s{sT0}, s{sT0}, {WS_KVF}")
        p.vmem(f"buffer_store_dword v{t}, v{t+1}, {srd(SWS)}, s{sT0} offen{g.sc}", "kvf")
    def p2_setup_dma(g):
        a = g.a
        g.wdma_voff(vBd0, 1024, vT, vT+1)
        a(f"v_add_u32 v{vBd1}, 7168, v{vBd0}")
        a(f"s_lshl_b32 s{sB0}, s{sN}, 7")
    def issue_B(g, p, u, b):
        if u < 12:   mul, add, sr = 12*16384, u*16384, SW2
        elif u < 14: mul, add, sr = 2*16384, (96 + u - 12)*16384, SW2
        else:        mul, add, sr = 4*16384, (u - 14)*16384, SWO
        p(f"s_add_u32 m0, s{sW2K}, {b}\ns_mul_i32 s{sT0}, s{sW}, {mul}\ns_add_u32 s{sT0}, s{sT0}, s{sB0}\ns_add_u32 s{sT0}, s{sT0}, {add}")
        p.vmem(f"buffer_load_dwordx4 v{vBd0}, {srd(sr)}, s{sT0} offen lds", ("B", u))
        p.vmem(f"buffer_load_dwordx4 v{vBd1}, {srd(sr)}, s{sT0} offen offset:1024 lds", ("B", u))
    def phase2(g, p, bpos, pending):
        a = g.a
        AC = lambda t, m: 192 + 16*(2*t + m)
        BR = lambda u: 120 + 8*u
        BJ = lambda k: 104 + 8*(k & 1)
        ND = 8
        AR = lambda u, m: 40 + 8*(u % ND) + 4*m
        KVF = 24
        vA1, vBt0, vBt1, vO = 8, 9, 10, 11
        vXR, vB2R = 12, 16
        t0, t1 = 20, 21
        if g.stamps: p(f"v_mov_b32 v23, v{vSTASH}"); p.stash = 23
        g.stamp(p, 19)
        for u, b in pending:
            bpos[u] = b; g.issue_B(p, u, b)
        if g.fused: g.p2_poll_setup(p)
        p(f"v_add_u32 v{vA1}, {HF_RT}, v{vL16}")
        g.tr_inrow(vBt0, t0, t1)
        p(f"v_lshrrev_b32 v{t0}, 5, v{vL}\nv_lshl_add_u32 v{vBt0}, v{t0}, 9, v{vBt0}\nv_add_u32 v{vBt0}, s{sW2K}, v{vBt0}\nv_xor_b32 v{vBt1}, 64, v{vBt0}")
        p.win.pop(vBt0, None); p.win.pop(vBt1, None)
        p(f"s_mul_i32 s{sA0}, s{sRB}, {2*HF_RT}")
        def loadA(u):
            if u < 12:   mul, add = 12*1024, u*1024
            elif u < 14: mul, add = 2*1024, (96 + u - 12)*1024
            else:        mul, add = 4*1024, (112 + u - 14)*1024
            p(f"s_mul_i32 s{sT0}, s{sW}, {mul}\ns_add_u32 s{sT0}, s{sT0}, s{sA0}\ns_add_u32 s{sT0}, s{sT0}, {add}")
            p.vmem(f"buffer_load_dwordx4 {vr(AR(u,0))}, v{vL16}, {srd(SWS)}, s{sT0} offen{g.sc}", ("A", u))
            p.vmem(f"buffer_load_dwordx4 {vr(AR(u,1))}, v{vA1}, {srd(SWS)}, s{sT0} offen{g.sc}", ("A", u))
        def rdB(u, dst):
            for t in range(2):
                for n in range(2): p.tr(dst + 4*t + 2*n, (vBt0, vBt1)[t], bpos[u] + n*1024, ("b", u))
        if not g.fused:
            for u in range(ND): loadA(u)
        for u in range(9):
            p.wait_vm(("B", u)); rdB(u, BR(u))
            if u >= 1:
                p.wait_lg(("b", u-1)); bpos[u+8] = bpos[u-1]; g.issue_B(p, u+8, bpos[u-1])
        p.wait_lg0(); bpos[17] = bpos[8]; g.issue_B(p, 17, bpos[8])
        g.stamp(p, 20)
        if g.fused:
            g.wait_h(p)
            for u in range(ND): loadA(u)
        p(f"v_lshrrev_b32 v{t0}, 3, v{vL}\nv_lshlrev_b32 v{vO}, 10, v{t0}\nv_and_b32 v{t0}, 7, v{vL}\nv_lshlrev_b32 v{t0}, 4, v{t0}\nv_add_u32 v{vO}, v{vO}, v{t0}")
        p(f"s_lshl_b32 s{sT2}, s{sRB}, 16\ns_lshl_b32 s{sT1}, s{sW}, 13\ns_add_u32 s{sT2}, s{sT2}, s{sT1}\ns_add_u32 s{sT2}, s{sT2}, s{sB0}")
        p.vmem(f"buffer_load_dwordx4 {vr(vXR)}, v{vO}, {srd(SX)}, s{sT2} offen", "xr")
        p.vmem(f"buffer_load_dwordx4 {vr(vB2R)}, v{t0}, {srd(SB2)}, s{sB0} offen", "xr")
        def loadKV():
            p(f"s_lshl_b32 s{sT0}, s{sW}, 12\ns_add_u32 s{sT0}, s{sT0}, {WS_KVF}")
            for k in range(4): p.vmem(f"buffer_load_dwordx4 {vr(KVF+4*k)}, v{vL16}, {srd(SWS)}, s{sT0} offen offset:{k*1024}{g.sc}", "kvf")
        for u in range(18):
            if u == 8:
                p.wait_vm(("B", 9)); rdB(9, BJ(9))
            if 9 <= u < 17:
                p.wait_vm(("B", u+1)); rdB(u+1, BJ(u+1))
            if u == 11:
                if g.fused: g.wait_kvf(p)
                loadKV()
            p.wait_vm(("A", u))
            if u in (0, 4, 8, 12, 14, 17): g.stamp(p, {0:21, 4:22, 8:23, 12:24, 14:25, 17:26}[u])
            bf = BR(u) if u < 9 else BJ(u)
            if u >= 14:
                p.wait_vm("kvf")
                hd = u - 14
                for m in range(2):
                    D = 120 + 16*m
                    p(mfma32(D, KVF + 4*hd, AR(u, m), 0))
                for m in range(2):
                    D = 120 + 16*m
                    num, den = (D, D+8) if hd % 2 == 0 else (D+8, D)
                    p(f"v_add_f32 v{den}, {f2u(1e-6)}, v{den}\nv_rcp_f32 v{den}, v{den}")
                    for k in range(8): p(f"v_mul_f32 v{num+k}, v{num+k}, v{den}")
                    for k in range(4): p(f"v_cvt_pk_bf16_f32 v{AR(u,m)+k}, v{num+2*k}, v{num+2*k+1}")
            if u >= 9: p.wait_lg(("b", u))
            for t in range(2):
                for m in range(2):
                    p(mfma32(AC(t, m), bf + 4*t, AR(u, m), 0 if u == 0 else AC(t, m)))
            if u + ND < 18:
                if g.fused and u + ND == 12: g.wait_a(p)
                loadA(u + ND)
        vb = 22
        p(f"v_and_b32 v{t0}, 15, v{vL}\nv_lshrrev_b32 v{t1}, 5, v{vL}\nv_xor_b32 v{t0}, v{t0}, v{t1}\nv_lshlrev_b32 v{vb}, 4, v{t0}")
        p(f"v_and_b32 v{t0}, 7, v{vL}\nv_lshl_add_u32 v{vb}, v{t0}, 8, v{vb}\nv_bfe_u32 v{t0}, v{vL}, 3, 2\nv_lshl_add_u32 v{vb}, v{t0}, 14, v{vb}\nv_add_u32 v{vb}, s{sW2K}, v{vb}")
        k = 0
        for m in range(2):
            for t in range(2):
                for qd in range(4):
                    r = KVF + (k & 7); k += 1
                    p(f"v_xor_b32 v{r}, {((8*t + 2*qd) << 4) | (m << 16)}, v{vb}")
                    p.lds(f"ds_write_b128 v{r}, {vr(AC(t,m) + 4*qd)}", "pw")
        p(f"v_lshrrev_b32 v{t0}, 3, v{vL}\nv_and_b32 v{t1}, 7, v{vL}\nv_lshlrev_b32 v{t1}, 1, v{t1}\nv_xor_b32 v{t1}, v{t1}, v{t0}")
        p(f"s_and_b32 s{sT0}, s{sW}, 1\ns_lshl_b32 s{sT0}, s{sT0}, 3\nv_xor_b32 v{t1}, s{sT0}, v{t1}\nv_lshlrev_b32 v{t1}, 4, v{t1}")
        p(f"v_lshl_add_u32 v{t1}, v{t0}, 8, v{t1}\ns_lshl_b32 s{sT0}, s{sW}, 14\nv_add_u32 v{t1}, s{sT0}, v{t1}\nv_xor_b32 v{t0}, 16, v{t1}")
        p.wait_lg0(); g.stamp(p, 27); p("s_barrier"); g.stamp(p, 28)
        for s in range(8):
            p.lds(f"ds_read_b128 {vr(40 + 8*s)}, v{t1} offset:{s*2048}", ("pr", s))
            p.lds(f"ds_read_b128 {vr(44 + 8*s)}, v{t0} offset:{s*2048}", ("pr", s))
        p.wait_vm("xr")
        E = 104
        for k in range(4):
            p(f"v_lshlrev_b32 v{E+2*k}, 16, v{vXR+k}\nv_and_b32 v{E+2*k+1}, 0xffff0000, v{vXR+k}")
            p(f"v_lshlrev_b32 v{E+8+2*k}, 16, v{vB2R+k}\nv_and_b32 v{E+8+2*k+1}, 0xffff0000, v{vB2R+k}")
        for k in range(8): p(f"v_add_f32 v{E+k}, v{E+k}, v{E+8+k}")
        for s in range(8):
            p.wait_lg(("pr", s))
            for k in range(8): p(f"v_add_f32 v{E+k}, v{E+k}, v{40+8*s+k}")
        for k in range(4): p(f"v_cvt_pk_bf16_f32 v{E+8+k}, v{E+2*k}, v{E+2*k+1}")
        p.vmem(f"buffer_store_dwordx4 {vr(E+8)}, v{vO}, {srd(SOUT)}, s{sT2} offen", "out")
        g.stamp_out(p, 0 if g.fused else 2)
        p("s_endpgm")
vBd0, vBd1 = 7, 0
HDR = open(f"cdna_kernels/{KN}.s.ref").read().split("; @launch")[0]
def kdesc(name):
    return f""".amdhsa_kernel {name}
  .amdhsa_next_free_vgpr 256
  .amdhsa_next_free_sgpr 102
  .amdhsa_accum_offset 256
  .amdhsa_group_segment_fixed_size 0
  .amdhsa_kernarg_size 88
  .amdhsa_user_sgpr_count 2
  .amdhsa_user_sgpr_kernarg_segment_ptr 1
  .amdhsa_system_sgpr_workgroup_id_x 1
.end_amdhsa_kernel
"""
def khead(name): return f".globl {name}\n.p2align 8\n.type {name},@function\n{name}:\n"
def build3():
    names = [KN + "_kernel", "kvr_kernel", "g2_kernel"]
    out = HDR
    out += f"; @launch kernel={names[0]} grid=(256,1,1) block=(512,1,1) lds=163840\n"
    out += f"; @launch kernel={names[1]} grid=(128,1,1) block=(64,1,1) lds=0\n"
    out += f"; @launch kernel={names[2]} grid=(256,1,1) block=(512,1,1) lds=163840\n"
    out += '.amdgcn_target "amdgcn-amd-amdhsa--gfx950"\n.text\n'
    g = Gen(); g.prologue(256)
    g.phase1(lambda p, al, q, tag: (g.stamp_out(p, 0), p("s_endpgm")))
    g.a("L_exit:\ns_endpgm")
    out += khead(names[0]) + g.a.finish()
    g = Gen(); g.prologue(128)
    g.a(f"s_and_b32 s{sI}, s2, 15\ns_lshr_b32 s{sT}, s2, 4")
    pp = Path(g.a); g.kvreduce(pp, sI, sT); g.stamp_out(pp, 1); g.a("L_exit:\ns_endpgm")
    out += khead(names[1]) + g.a.finish().replace("L_exit", "L_exit1")
    g = Gen(); g.prologue(256); g.p2_setup_dma()
    g.phase2(Path(g.a), {}, [(u, u*16384) for u in range(9)]); g.a("L_exit:\ns_endpgm")
    out += khead(names[2]) + g.a.finish().replace("L_exit", "L_exit2")
    out += '.section .rodata,"a"\n.p2align 6\n' + "".join(kdesc(n) + ".p2align 6\n" for n in names)
    return out
def build1():
    name = KN + "_kernel"
    out = HDR + "; @launch grid=(256,1,1) block=(512,1,1) lds=163840\n"
    out += '.amdgcn_target "amdgcn-amd-amdhsa--gfx950"\n.text\n'
    g = Gen(True); g.prologue(256)
    g.phase1(g.after_fused)
    g.a("L_p2:"); g.a.fence()
    p = Path(g.a); p.vm = [("B", u) for u in range(9) for _ in range(2)]
    g.phase2(p, {u: u*16384 for u in range(9)}, [])
    g.a("L_exit:\ns_endpgm")
    out += khead(name) + g.a.finish()
    out += '.section .rodata,"a"\n.p2align 6\n' + kdesc(name)
    return out
if __name__ == "__main__":
    mode = sys.argv[1] if len(sys.argv) > 1 else "3"
    dst = sys.argv[2] if len(sys.argv) > 2 else f"cdna_kernels/{KN}.s"
    open(dst, "w").write(build3() if mode == "3" else build1())
```

```python
import sys, copy, struct
sys.path.insert(0, "dev")
from asmb import Asm
KN = "parallel_sum__linear_attn_block__dense_activation_gelu__prompt"
def f2u(x): return "0x%08x" % struct.unpack("<I", struct.pack("<f", x))[0]
LOG2E = 1.4426950408889634; LN2 = 0.6931471805599453
GC0 = -2*0.7978845608028654*LOG2E; GC1 = GC0*0.044715
WS_HF = 0; HF_RT = 144*1024
WS_KVP = 10 << 20
WS_KVF = 14 << 20
WS_FLG = (14 << 20) + (64 << 10)
WS_STAMP = 15 << 20
WS_SIZE = 17 << 20
import os
LIM_H = int(os.environ.get('LIM_H', 5)); LIM_A = int(os.environ.get('LIM_A', 6)); PRO_H = int(os.environ.get('PRO_H', 3)); PRO_A = int(os.environ.get('PRO_A', 4)); PRO2 = int(os.environ.get('PRO2', 4)); PFK = int(os.environ.get('PFK', 7)); FLUSH1 = int(os.environ.get('FLUSH1', 0)); RAMP = int(os.environ.get('RAMP', 0)); NB1 = int(os.environ.get('NB1', 2)); APF = int(os.environ.get('APF', 0)); REDP = int(os.environ.get('REDP', 1)); SLP = int(os.environ.get('SLP', 4)); FRONT = int(os.environ.get('FRONT', 40)); FRONTK = int(os.environ.get('FRONTK', 30)); F1POS = int(os.environ.get('F1POS', 0)); PRIO = int(os.environ.get('PRIO', 1)); RS = [int(x) for x in os.environ.get('RS', '1,1').split(',')]; H2U = int(os.environ.get('H2U', 1)); H1L = int(os.environ.get('H1L', 1)); PBW = float(os.environ.get('PBW', 0.55)); FKW = float(os.environ.get('FKW', -1)); KVW = float(os.environ.get('KVW', 0.8)); R1POS = int(os.environ.get('R1POS', 80)); ASC = os.environ.get('ASC', ''); PRO_B = int(os.environ.get('PRO_B', 4))
STAMPS = int(os.environ.get("STAMPS", "0")); STAMPI = "s_memrealtime" if STAMPS == 1 else "s_memtime"
SLOT = 8192; NSLOT = 19; SCR = 19*SLOT
SC_STAT = SCR; SC_CS = SCR + 4096; SC_RS = SCR + 7168; SC_CNT = SCR + 7680
SX, SQ, S1, SWS, SW2, SWO, SOUT, SB1, SB2, SDBG = 4, 8, 12, 16, 20, 24, 28, 32, 36, 40
sW, sR, sC, sI, sT = 44, 45, 46, 47, 48
sW1K, sW2K, sXO, sWO_, sWO2, sHF, sKVP, sT0, sT1, sT2 = 49, 50, 51, 52, 53, 54, 55, 56, 57, 58
sRB, sN, sA0, sB0, sROT = 59, 60, 61, 62, 63
sTX, sTW = 64, 72
sNON = 94
POLLMAX = 8000
def srd(n): return f"s[{n}:{n+3}]"
def vr(a, n=4): return f"v[{a}:{a+n-1}]"
vL, vWd, vHd, vL16 = 1, 4, 5, 6
vHa, vHc = 2, 3
vG8 = 8
vXA, vX0, vX1, vS, vQ = 8, 12, 13, 14, 15
vWa, vWb, vWc = 16, 17, 18
vKa, vKb, vKc = 19, 20, 21
vC0, vC1, vIRS, vSTASH, vRL = 22, 23, 24, 25, 26
vRS = 55
vB1 = 27
vCSa, vCSr = 30, 31
vXE = 32
vSEL = 36
vCS0, vCS1 = 40, 44
vT = 48
vF = 64
ACC = [80, 96, 112]
vNON = 32
vCSF = 44
vXF = 128
class Path:
    def __init__(s, a): s.a = a; s.vm = []; s.lg = []; s.win = {}; s.pend = []; s.stash = vSTASH
    def fork(s):
        p = Path(s.a); p.vm = list(s.vm); p.lg = list(s.lg); p.win = dict(s.win); p.pend = list(s.pend); p.later = list(getattr(s, 'later', [])); p.stash = s.stash; return p
    def __call__(s, t): s.a(t)
    def vmem(s, t, tag=None): s.a(t); s.vm.append(tag)
    def lds(s, t, tag=None): s.a(t); s.lg.append(tag)
    def _cnt(s, q, tag):
        idx = [k for k, x in enumerate(q) if x == tag]
        if not idx: return None
        return len(q) - 1 - idx[-1]
    def wait_vm(s, tag):
        isopt = lambda x: isinstance(x, tuple) and x[0] == "opt"
        idx = [k for k, x in enumerate(s.vm) if x == tag]
        if not idx: return
        later = s.vm[idx[-1]+1:]
        n = len(later) if isopt(tag) else sum(1 for x in later if not isopt(x))
        s.a(f"s_waitcnt vmcnt({min(n, 63)})")
        s.vm = ([x for x in s.vm[:idx[-1]+1] if not isopt(x)] if isopt(tag) else []) + later
    def wait_lg(s, tag):
        n = s._cnt(s.lg, tag)
        if n is None: return
        n = min(n, 15); s.a(f"s_waitcnt lgkmcnt({n})"); s.lg = s.lg[len(s.lg)-n:] if n else []
    def wait_lg0(s, force=False):
        if s.lg or force or s.pend: s.a("s_waitcnt lgkmcnt(0)"); s.lg = []
        for idx, r in s.pend: s.a(f"v_writelane_b32 v{s.stash}, s{r}, {idx}")
        s.pend = []
    def wait_vm0(s):
        s.a("s_waitcnt vmcnt(0)"); s.vm = []
    def la(s, reg, off):
        w = off >> 16; cur = s.win.get(reg, 0)
        if w != cur:
            s.a(f"v_add_u32 v{reg}, {((w-cur) << 16) & 0xffffffff:#x}, v{reg}"); s.win[reg] = w
        return f"v{reg}", off & 0xffff
    def tr(s, dst, reg, off, tag):
        r, o = s.la(reg, off); s.lds(f"ds_read_b64_tr_b16 {vr(dst,2)}, {r} offset:{o}", tag)
    def rd128(s, dst, reg, off, tag):
        r, o = s.la(reg, off); s.lds(f"ds_read_b128 {vr(dst)}, {r} offset:{o}", tag)
class Rec:
    def __init__(s): s.ops = []; s.grp = None
    def _add(s, f):
        if s.grp is not None: s.grp.append(f)
        else: s.ops.append(f)
    def begin(s): s.grp = []
    def end(s):
        gl = s.grp; s.grp = None; s.ops.append(lambda p: [f(p) for f in gl])
    def __call__(s, t):
        for l in t.split("\n"):
            if l.strip(): s._add(lambda p, l=l: p(l))
    def vmem(s, t, tag=None): s._add(lambda p: p.vmem(t, tag))
    def lds(s, t, tag=None): s._add(lambda p: p.lds(t, tag))
    def wait_lg(s, tag): s._add(lambda p: p.wait_lg(tag))
    def wait_vm(s, tag): s._add(lambda p: p.wait_vm(tag))
    def tr(s, dst, reg, off, tag): s._add(lambda p: p.tr(dst, reg, off, tag))
    def gap(s, n):
        for _ in range(n): s._add(lambda p: None)
class Fill:
    def __init__(s, lists, nsteps): s.l = [[x, 0] for x in lists if x]; s.n = nsteps; s.k = 0
    def step(s, p):
        s.k += 1
        for e in s.l:
            tgt = min(len(e[0]), -(-len(e[0]) * s.k // s.n))
            while e[1] < tgt: e[0][e[1]](p); e[1] += 1
    def drain(s, p):
        for e in s.l:
            while e[1] < len(e[0]): e[0][e[1]](p); e[1] += 1
def window(ops, a, b):
    if not ops: return ops
    n = len(ops) / (b - a); return [lambda p: None]*int(n*a) + ops + [lambda p: None]*int(n*(1-b))
vBt0, vBt1 = 9, 10
BR = lambda u: 128 + 8*u if u < 8 else 120
class Alloc:
    def __init__(s): s.free = [True]*NSLOT; s.pos = {}
    def get(s, name, n, cand):
        for p in cand:
            if p + n <= NSLOT and all(s.free[p:p+n]):
                for q in range(p, p+n): s.free[q] = False
                s.pos[name] = (p, n); return p
        return None
    def rel(s, name):
        p, n = s.pos[name]
        for q in range(p, p+n): s.free[q] = True
    def base(s, name): return s.pos[name][0]*SLOT
def mfma32(d, a, b, c): return f"v_mfma_f32_32x32x16_bf16 {vr(d,16)}, {vr(a)}, {vr(b)}, {c if c == 0 else vr(c,16)}"
def mfma16(d, a, b, c): return f"v_mfma_f32_16x16x32_bf16 {vr(d,4)}, {vr(a)}, {vr(b)}, {c if c == 0 else vr(c,4)}"

class Gen:
    def __init__(g, fused=False):
        g.stamps = STAMPS; g.a = Asm(); g.fused = fused; g.sc = " sc1" if fused else ""
    def stamp(g, p, idx):
        if not g.stamps: return
        if len(p.pend) == 7: p.wait_lg0(True)
        r = 80 + 2*len(p.pend); p(f"{STAMPI} s[{r}:{r+1}]"); p.pend.append((idx, r))
    def stamp_out(g, p, region):
        if not g.stamps: return
        g.stamp(p, 63)
        p("s_memtime s[100:101]"); p.wait_lg0(True)
        p(f"s_sub_u32 s100, s100, s96\nv_writelane_b32 v{p.stash}, s100, 62")
        p(f"s_lshl_b32 s{sT0}, s2, 3\ns_add_u32 s{sT0}, s{sT0}, s{sW}\ns_lshl_b32 s{sT0}, s{sT0}, 8\ns_add_u32 s{sT0}, s{sT0}, {WS_STAMP + region*(512<<10)}")
        p(f"v_lshlrev_b32 v{vT+1}, 2, v{vL}")
        p.vmem(f"buffer_store_dword v{p.stash}, v{vT+1}, {srd(SWS)}, s{sT0} offen")
    def prologue(g, nwg):
        a = g.a
        a(f"s_cmp_ge_u32 s2, {nwg}\ns_cbranch_scc1 L_exit")
        if g.stamps: a("s_memrealtime s[98:99]\ns_memtime s[96:97]")
        a("s_load_dwordx16 s[64:79], s[0:1], 0\ns_load_dwordx4 s[80:83], s[0:1], 64\ns_load_dwordx2 s[84:85], s[0:1], 80")
        a(f"v_lshrrev_b32 v2, 6, v0\nv_and_b32 v{vL}, 63, v0\nv_readfirstlane_b32 s{sW}, v2")
        a(f"s_and_b32 s{sR}, s{sW}, 3\ns_lshr_b32 s{sC}, s{sW}, 2\ns_lshl_b32 s{sW1K}, s{sW}, 10\ns_lshl_b32 s{sW2K}, s{sW}, 11")
        a(f"s_and_b32 s{sT0}, s2, 7\ns_lshr_b32 s{sT1}, s2, 3")
        a(f"s_lshr_b32 s{sROT}, s{sT1}, 2\ns_and_b32 s{sI}, s{sT0}, 1\ns_lshl_b32 s{sI}, s{sI}, 3\ns_add_u32 s{sI}, s{sI}, s{sROT}")
        a(f"s_and_b32 s{sT}, s{sT0}, 6\ns_and_b32 s{sT2}, s{sT1}, 1\ns_add_u32 s{sT}, s{sT}, s{sT2}\ns_and_b32 s{sT2}, s{sT1}, 2\ns_lshl_b32 s{sT2}, s{sT2}, 2\ns_add_u32 s{sT}, s{sT}, s{sT2}")
        a(f"s_and_b32 s{sT2}, s{sT1}, 3\ns_lshl_b32 s{sT2}, s{sT2}, 1\ns_add_u32 s{sROT}, s{sROT}, s{sT2}")
        a(f"s_lshr_b32 s{sRB}, s{sT1}, 3\ns_lshl_b32 s{sT2}, s{sT0}, 2\ns_add_u32 s{sRB}, s{sRB}, s{sT2}\ns_and_b32 s{sN}, s{sT1}, 7")
        a(f"v_lshlrev_b32 v{vL16}, 4, v{vL}")
        a("s_waitcnt lgkmcnt(0)")
        for d, p, n in ((SX,64,2048*1024),(SQ,66,512*3072),(SWO,68,512*1024),(S1,72,512*3584),(SB1,74,3584),(SW2,76,1792*1024),
                        (SB2,78,1024),(SOUT,80,2048*1024),(SDBG,82,256),(SWS,84,WS_SIZE)):
            a(f"s_mov_b32 s{d}, s{p}\ns_mov_b32 s{d+1}, s{p+1}\ns_mov_b32 s{d+2}, {n}\ns_mov_b32 s{d+3}, 0x00020000")
        if g.stamps:
            a(f"v_mov_b32 v{vSTASH}, 0\nv_writelane_b32 v{vSTASH}, s{98 if STAMPS == 1 else 96}, 0")
    def wdma_voff(g, dst, stride, t0, t1):
        a = g.a
        a(f"v_lshrrev_b32 v{t0}, 3, v{vL}\nv_mul_u32_u24 v{dst}, {stride}, v{t0}")
        a(f"v_lshrrev_b32 v{t0}, 2, v{vL}\nv_and_b32 v{t0}, 4, v{t0}\nv_and_b32 v{t1}, 7, v{vL}\nv_xor_b32 v{t0}, v{t0}, v{t1}")
        a(f"v_lshl_add_u32 v{dst}, v{t0}, 4, v{dst}")
    def tr_inrow(g, dst, t0, t1):
        a = g.a
        a(f"v_and_b32 v{dst}, 16, v{vL}\nv_lshlrev_b32 v{dst}, 1, v{dst}\nv_and_b32 v{t0}, 3, v{vL}\nv_lshl_add_u32 v{dst}, v{t0}, 3, v{dst}")
        a(f"v_and_b32 v{t0}, 8, v{vL}\nv_lshl_add_u32 v{dst}, v{t0}, 3, v{dst}")
        a(f"v_bfe_u32 v{t0}, v{vL}, 2, 2\nv_lshl_add_u32 v{dst}, v{t0}, 7, v{dst}")
    def tables(g, stride, kcs):
        for kc in kcs:
            g.a(f"s_add_u32 s{sT0}, s{sROT}, {kc}\ns_and_b32 s{sT0}, s{sT0}, 7\ns_lshl_b32 s{sT1}, s{sT0}, 7\ns_add_u32 s{sTX+kc}, s{sXO}, s{sT1}")
            g.a(f"s_mul_i32 s{sT1}, s{sT0}, {64*stride}\ns_add_u32 s{sTW+kc}, s{sWO_}, s{sT1}")
    def issue(g, p, al, u):
        k = u[0]; b = al.base(u)
        if k == "X":
            p(f"s_add_u32 m0, s{sW2K}, {b}")
            p.vmem(f"buffer_load_dwordx4 v{vX0}, {srd(SX)}, s{sTX+u[1]} offen lds", u)
            p.vmem(f"buffer_load_dwordx4 v{vX1}, {srd(SX)}, s{sTX+u[1]} offen offset:1024 lds", u)
        elif k == "W":
            p(f"s_add_u32 m0, s{sW1K}, {b}\ns_add_u32 s{sT0}, s{sTW+u[2]}, {u[1]*128}")
            p.vmem(f"buffer_load_dwordx4 v{vWd}, {srd(S1)}, s{sT0} offen lds", u)
        elif k == "KV":
            p(f"s_add_u32 m0, s{sW2K}, {b}\ns_add_u32 s{sT0}, s{sTW+u[1]}, 1024")
            p.vmem(f"buffer_load_dwordx4 v{vWd}, {srd(SQ)}, s{sT0} offen lds", u)
            p.vmem(f"buffer_load_dwordx4 v{vWd}, {srd(SQ)}, s{sT0} offen offset:1024 lds", u)
        elif k == "Q":
            p(f"s_add_u32 m0, s{sW1K}, {b}")
            p.vmem(f"buffer_load_dwordx4 v{vWd}, {srd(SQ)}, s{sTW+u[1]} offen lds", u)
        elif k == "Hh":
            p(f"s_add_u32 m0, s{sW1K}, {b}\ns_add_u32 s{sT0}, s{sROT}, s{sC}\ns_add_u32 s{sT0}, s{sT0}, {2*u[1]}\ns_and_b32 s{sT0}, s{sT0}, 7")
            p(f"s_mul_i32 s{sT0}, s{sT0}, {64*3584}\ns_add_u32 s{sT0}, s{sT0}, s{sWO2}")
            p.vmem(f"buffer_load_dwordx4 v{vHd}, {srd(S1)}, s{sT0} offen lds", u)
        elif k == "B":
            g.issue_B(p, u[1], b)
    USZ = {"X":2, "W":1, "KV":2, "Q":1, "Hh":1, "B":2}
    HP = {1:0, 3:1, 4:2, 5:3, 6:4, 7:5, 8:6, 0:7, 2:8}
    AP = {4:0, 5:1, 6:2, 7:3, 8:4, 0:5, 1:6, 2:7, 3:8}
    def pref(g, u):
        k = u[0]; M = g.AP if g.atype else g.HP
        P = lambda x: 2*M[x]
        both = lambda L: [P(x) + e for x in L for e in range(2)]
        if k == "B": return [2*u[1]]
        if k == "X": return [P(([0,2,4,6,8,1,3,5] if g.atype else [0,1,3,4,6,7,0,1])[u[1]])]
        if k == "KV": return [P([1,3,5,7,0,2,4,6][u[1]])]
        if k == "W":
            if u[1] == 0: return [[P(2), P(2)+1, P(5), P(5)+1, P(8), P(8)+1, 18, P(2)][u[2]]]
            return both([3,4,5,6]) if u[1] == 1 else [P(2)+1] + both([7,8,0]) + [18]
        if k == "Hh": return both([2,3])
        if k == "Q": return [18] + both([7,8,0]) + [P(1)]
    def dmas(g, al, units):
        r = Rec()
        for u in units: r.begin(); g.issue(r, al, u); r.end()
        return r.ops
    def plan(g, al, queue, limit=99):
        out = []; blocked = set()
        for u in list(queue):
            n = g.USZ[u[0]]
            if n > limit: break
            cand = [c for c in g.pref(u) if not any(q in blocked for q in range(c, c+n))]
            if al.get(u, n, cand) is None:
                if u[0] == "B": break
                pf = g.pref(u)
                for c in pf: blocked.update(range(c, c+n))
                continue
            out.append(u); queue.remove(u); limit -= n
        return out
    def p1_setup(g):
        a = g.a; t0, t1 = vT, vT+1
        a(f"v_lshrrev_b32 v{t0}, 4, v{vL}\nv_and_b32 v{t1}, 7, v{vL}\nv_xor_b32 v{t0}, v{t0}, v{t1}\nv_lshlrev_b32 v{t0}, 4, v{t0}")
        a(f"v_lshrrev_b32 v{t1}, 3, v{vL}\nv_lshl_add_u32 v{vX0}, v{t1}, 10, v{t0}")
        a(f"v_xor_b32 v{vX1}, 64, v{vX0}\nv_add_u32 v{vX1}, 7168, v{vX1}")
        a(f"s_lshl_b32 s{sXO}, s{sI}, 17\ns_lshl_b32 s{sT0}, s{sW}, 14\ns_add_u32 s{sXO}, s{sXO}, s{sT0}")
    def p1_setup2(g, atype):
        a = g.a; t0, t1, t2 = vT, vT+1, vT+2
        a(f"v_and_b32 v{t0}, 31, v{vL}\nv_lshlrev_b32 v{t1}, 7, v{t0}")
        a(f"v_bfe_u32 v{t0}, v{vL}, 1, 3\nv_lshrrev_b32 v{t2}, 5, v{vL}\nv_xor_b32 v{t0}, v{t0}, v{t2}")
        a(f"v_lshl_add_u32 v{t1}, v{t0}, 4, v{t1}\ns_lshl_b32 s{sT0}, s{sR}, 12\nv_add_u32 v{t1}, s{sT0}, v{t1}")
        a(f"s_lshl_b32 s{sT0}, s{sC}, 6\nv_xor_b32 v{vXA}, s{sT0}, v{t1}")
        for kk in range(1, 4): a(f"v_xor_b32 v{vXA+kk}, {kk*32}, v{vXA}")
        g.tr_inrow(t1, t0, t2)
        a(f"v_xor_b32 v{t1}, s{sT0}, v{t1}")
        a(f"v_lshrrev_b32 v{t2}, 5, v{vL}")
        for (ra, rb, rc, ps) in ((vWa, vWb, vWc, 1024),) + (((vKa, vKb, vKc, 2048),) if atype else ()):
            sh = 10 if ps == 1024 else 11
            a(f"v_lshl_add_u32 v{t0}, v{t2}, {sh}, v{t1}")
            a(f"s_lshl_b32 s{sT1}, s{sC}, {sh+2}\nv_add_u32 v{ra}, s{sT1}, v{t0}\nv_xor_b32 v{rb}, {4*ps}, v{ra}")
            a(f"s_lshl_b32 s{sT1}, s{sR}, {sh+1}\nv_add_u32 v{rc}, s{sT1}, v{t0}")
        if atype:
            a(f"v_and_b32 v{vHa}, 16, v{vL}\nv_lshlrev_b32 v{vHa}, 1, v{vHa}\nv_and_b32 v{t0}, 3, v{vL}\nv_lshl_add_u32 v{vHa}, v{t0}, 3, v{vHa}")
            a(f"v_bfe_u32 v{t0}, v{vL}, 2, 2\nv_lshl_add_u32 v{vHa}, v{t0}, 6, v{vHa}\nv_lshl_add_u32 v{vHa}, v{t2}, 9, v{vHa}")
            a(f"v_add_u32 v{vHc}, s{sW1K}, v{vHa}\ns_lshl_b32 s{sT1}, s{sC}, 11\nv_add_u32 v{vHa}, s{sT1}, v{vHa}")
        a(f"v_and_b32 v{t0}, 31, v{vL}\nv_cmp_eq_u32 vcc, 0, v{t0}\nv_cmp_eq_u32 s[{sT0}:{sT0+1}], 20, v{t0}\ns_or_b64 vcc, vcc, s[{sT0}:{sT0+1}]")
        a(f"v_mov_b32 v{t1}, 0x3f803f80\nv_cndmask_b32 v{vSEL}, 0, v{t1}, vcc")
        for k in range(1, 4): a(f"v_mov_b32 v{vSEL+k}, v{vSEL}")
        a(f"v_lshlrev_b32 v{vCSr}, 4, v{t0}\ns_lshl_b32 s{sT0}, s{sC}, 9\ns_add_u32 s{sT0}, s{sT0}, {SC_CS}\nv_add_u32 v{vCSr}, s{sT0}, v{vCSr}")
        a(f"s_lshl_b32 s{sT0}, s{sR}, 2\nv_add_u32 v{vCSa}, s{sT0}, v{vCSr}")
        a(f"v_mov_b32 v{vS}, 0\nv_mov_b32 v{vQ}, 0\nv_mov_b32 v{t0}, {SC_CNT}\nds_write_b64 v{t0}, v[{vS}:{vQ}]\ns_waitcnt lgkmcnt(0)")
    def stats_ops(g, regs):
        ops = []
        for k, r in enumerate(regs):
            lo, hi = vT + 2*(k & 3), vT + 2*(k & 3) + 1
            ops += [f"v_lshlrev_b32 v{lo}, 16, v{r}", f"v_and_b32 v{hi}, 0xffff0000, v{r}",
                    f"v_add_f32 v{vS}, v{vS}, v{lo}", f"v_fmac_f32 v{vQ}, v{lo}, v{lo}",
                    f"v_add_f32 v{vS}, v{vS}, v{hi}", f"v_fmac_f32 v{vQ}, v{hi}, v{hi}"]
        return ops
    def cs_write(g, p, acc, tileidx):
        p(f"s_mov_b32 exec_hi, 0")
        p.lds(f"ds_write_b32 v{vCSa}, v{acc} offset:{int(tileidx*1024)}", "csw")
        p(f"s_mov_b32 exec_hi, -1")
    def i0(g, p, al, queue, atype):
        nt = 2 if atype else 1
        ra, rb, rc, ps = (vKa, vKb, vKc, 2048) if atype else (vWa, vWb, vWc, 1024)
        WU = lambda kc: ("KV", kc) if atype else ("W", 0, kc)
        FR = lambda kk, t: (vF, ACC[2])[t] + 4*kk
        def rdx(kc):
            for kk in range(4): p.rd128(vXF + 16*kc + 4*kk, vXA + kk, al.base(("X", kc)), ("x", kc, kk))
        def rdw(kc, kk, t):
            for n in range(2):
                p.tr(FR(kk, t) + 2*n, ra if kk < 2 else rb, al.base(WU(kc)) + (kk & 1)*2*ps + n*512 + t*1024, ("w", kc, kk, t))
        def rdc(kc, t):
            for n in range(2): p.tr(vT + 8 + 4*t + 2*n, rc, al.base(WU(kc)) + n*512 + t*1024, ("c", kc, t))
        def land(kc):
            p.wait_vm(("X", kc)); p.wait_vm(WU(kc)); p("s_barrier"); g.stamp(p, 1 + kc)
        land(0); rdx(0)
        for kk in range(4):
            for t in range(nt): rdw(0, kk, t)
        for t in range(nt): rdc(0, t)
        for u in g.plan(al, queue, PRO2): g.issue(p, al, u)
        for kc in range(8):
            if kc < 7: land(kc + 1); rdx(kc + 1)
            if 1 <= kc < 7: al.rel(("X", kc-1)); al.rel(WU(kc-1))
            newu = g.plan(al, queue, LIM_A if atype else LIM_H)
            if g.fused and kc == 4: g.nonce_load(p)
            st = Rec()
            st.wait_lg(("x", kc, 1))
            for o in g.stats_ops(range(vXF + 16*kc, vXF + 16*kc + 8)): st(o)
            fl = Fill([g.dmas(al, newu), st.ops], 4*nt + nt)
            for kk in range(4):
                ks = 4*kc + kk
                for t in range(nt):
                    p.wait_lg(("x", kc, kk)); p.wait_lg(("w", kc, kk, t))
                    x = vXF + 4*ks; c = 0 if ks == 0 else ACC[t]
                    p(mfma32(ACC[t], x, FR(kk, t), c) if atype else mfma32(ACC[t], FR(kk, t), x, c))
                    if kc < 7: rdw(kc + 1, kk, t)
                    fl.step(p)
                if kk == 1:
                    for t in range(nt):
                        p.wait_lg(("c", kc, t))
                        cs = (vCS0, vCS1)[t]
                        p(mfma16(cs, vSEL, vT + 8 + 4*t, 0 if kc == 0 else cs))
                        if kc < 7: rdc(kc + 1, t)
                        fl.step(p)
            fl.drain(p)
            if g.fused and kc == PFK: g.l2pf(p)
        t0 = vT
        p(f"v_and_b32 v{t0}, 31, v{vL}\nv_lshlrev_b32 v{t0}, 5, v{t0}\ns_lshl_b32 s{sT0}, s{sR}, 10\ns_add_u32 s{sT0}, s{sT0}, {SC_STAT}\nv_add_u32 v{t0}, s{sT0}, v{t0}")
        p(f"v_lshrrev_b32 v{t0+1}, 5, v{vL}\nv_lshl_add_u32 v{t0+1}, v{t0+1}, 3, v{t0}\ns_lshl_b32 s{sT0}, s{sC}, 4\nv_add_u32 v{t0+1}, s{sT0}, v{t0+1}")
        p.lds(f"ds_write_b64 v{t0+1}, v[{vS}:{vQ}]", "stw")
        for t in range(nt): g.cs_write(p, (vCS0, vCS1)[t], t)
        g.stat_addr = t0
    def stats_fin(g, p, atype):
        t = vT + 2
        p.lds(f"ds_read_b128 {vr(t)}, v{vT}", "st"); p.lds(f"ds_read_b128 {vr(t+4)}, v{vT} offset:16", "st")
        p.wait_lg0()
        p(f"v_add_f32 v{t}, v{t}, v{t+2}\nv_add_f32 v{t+4}, v{t+4}, v{t+6}\nv_add_f32 v{t+1}, v{t+1}, v{t+3}\nv_add_f32 v{t+5}, v{t+5}, v{t+7}")
        p(f"v_add_f32 v{t}, v{t}, v{t+4}\nv_add_f32 v{t+1}, v{t+1}, v{t+5}")
        p(f"v_mul_f32 v{t}, {f2u(-1/512)}, v{t}")
        p(f"v_mul_f32 v{t+1}, {f2u(1/512)}, v{t+1}\nv_fma_f32 v{t+1}, -v{t}, v{t}, v{t+1}")
        p(f"v_max_f32 v{t+1}, 0, v{t+1}\nv_add_f32 v{t+1}, {f2u(1e-5)}, v{t+1}")
        p(f"v_sqrt_f32 v{vIRS}, v{t+1}\nv_rcp_f32 v{vRS}, v{vIRS}")
        p(f"v_mul_f32 v{vRL}, {f2u(LOG2E)}, v{vRS}\nv_mul_f32 v{vC0}, {f2u(GC0)}, v{vRS}\nv_mul_f32 v{vC1}, v{vRS}, v{vRS}")
        p(f"v_mul_f32 v{vC1}, v{vC1}, v{vRS}\nv_mul_f32 v{vC1}, {f2u(GC1)}, v{vC1}")
        p(f"v_cvt_pk_bf16_f32 v{t+2}, v{t}, v{vIRS}")
        p(f"v_lshlrev_b32 v{t+3}, 16, v{t+2}\nv_and_b32 v{t+4}, 0xffff0000, v{t+2}")
        p(f"v_sub_f32 v{t+5}, v{t}, v{t+3}\nv_sub_f32 v{t+6}, v{vIRS}, v{t+4}")
        p(f"v_cvt_pk_bf16_f32 v{t+5}, v{t+3}, v{t+5}\nv_cvt_pk_bf16_f32 v{t+6}, v{t+6}, 0")
        p(f"v_cmp_gt_u32 vcc, 32, v{vL}")
        p(f"v_cndmask_b32 v{vXE}, 0, v{t+5}, vcc\nv_cndmask_b32 v{vXE+1}, 0, v{t+2}, vcc\nv_cndmask_b32 v{vXE+2}, 0, v{t+6}, vcc\nv_mov_b32 v{vXE+3}, 0")
        if atype:
            p(f"v_and_b32 v{t}, 31, v{vL}\nv_lshlrev_b32 v{t}, 2, v{t}\ns_lshl_b32 s{sT0}, s{sR}, 7\ns_add_u32 s{sT0}, s{sT0}, {SC_RS}\nv_add_u32 v{t}, s{sT0}, v{t}")
            p.lds(f"ds_write_b32 v{t}, v{vRL}", "rsw")
    def ext(g, p, acc, csoff, bias, transposed, two=False):
        t = vT
        p.lds(f"ds_read_b128 {vr(t)}, v{vCSr} offset:{csoff}", "cs")
        if two:
            p(f"v_xor_b32 v{t+8}, 512, v{vCSr}")
            p.lds(f"ds_read_b128 {vr(t+8)}, v{t+8} offset:{csoff}", "cs")
        p.gap(6)
        p.wait_lg("cs")
        if two:
            for k in range(4): p(f"v_add_f32 v{t+k}, v{t+k}, v{t+8+k}")
        p(f"v_add_f32 v{t}, v{t}, v{t+1}\nv_add_f32 v{t+2}, v{t+2}, v{t+3}\nv_add_f32 v{t}, v{t}, v{t+2}")
        p(f"v_cvt_pk_bf16_f32 v{t+4}, v{t}, v{t}\nv_lshlrev_b32 v{t+1}, 16, v{t+4}\nv_sub_f32 v{t}, v{t}, v{t+1}")
        if bias is not None:
            p(f"v_lshlrev_b32 v{t+1}, 16, v{bias}\nv_cvt_pk_bf16_f32 v{t+5}, v{t}, v{t+1}\nv_mov_b32 v{t+6}, v{bias}")
        else:
            p(f"v_cvt_pk_bf16_f32 v{t+5}, v{t}, 0\nv_mov_b32 v{t+6}, 0")
        p(f"v_mov_b32 v{t+7}, 0")
        p.gap(2)
        p(mfma32(acc, t+4, vXE, acc) if transposed else mfma32(acc, vXE, t+4, acc))
        p.gap(10)
    def store_frag(g, p, src, soff, tag="hst"):
        p.begin()
        p(f"s_add_u32 s{sT2}, s{sHF}, {soff}")
        p.vmem(f"buffer_store_dwordx4 {vr(src)}, v{vL16}, {srd(SWS)}, s{sT2} offen{g.sc}", tag)
        p.end()
    def diag(g, p, a0, n, chain, dst, done):
        ch = [chain(a0 + e, vT + 8 + (e & 7), e) for e in range(n)]; L = len(ch[0])
        for d in range(n + L):
            e = d - L
            if e >= 0 and e & 1:
                p(f"v_cvt_pk_bf16_f32 v{dst + (e >> 1)}, v{a0+e-1}, v{a0+e}")
                if e & 7 == 7: done(e >> 3)
            for e in range(max(0, d - L + 1), min(n, d + 1)):
                o = ch[e][d - e]
                if callable(o): o(p)
                else: p(o)
                if "exp" in str(o) or "rcp" in str(o): p.gap(1)
    def gelu_chain(g, x, y, e):
        return [f"v_mul_f32 v{y}, v{x}, v{x}", f"v_fma_f32 v{y}, v{y}, v{vC1}, v{vC0}", f"v_mul_f32 v{y}, v{y}, v{x}", f"v_exp_f32 v{y}, v{y}",
                f"v_fma_f32 v{y}, v{y}, v{vIRS}, v{vIRS}", f"v_rcp_f32 v{y}, v{y}", f"v_mul_f32 v{x}, v{y}, v{x}"]
    def phi_chain(g, x, y, sc):
        return [f"v_mul_f32 v{x}, v{x}, v{sc}", f"v_exp_f32 v{y}, v{x} clamp", f"v_max_f32 v{x}, 0, v{x}",
                f"v_fmaak_f32 v{x}, v{x}, v{vKa}, {f2u(1e-6)}", f"v_add_f32 v{x}, v{x}, v{y}"]
    def epi_gelu(g, acc, csoff, bias, soff, tag="hst"):
        p = Rec()
        g.ext(p, acc, csoff, bias, True)
        g.diag(p, acc, 16, g.gelu_chain, vT, lambda b: g.store_frag(p, vT + 4*b, soff + 1024*b, tag))
        return p.ops
    def epi_q(g, acc, csoff, soff):
        p = Rec()
        g.ext(p, acc, csoff, None, True)
        g.diag(p, acc, 16, lambda x, y, e: g.phi_chain(x, y, vRL), vT, lambda b: g.store_frag(p, vT + 4*b, soff + 1024*b))
        return p.ops
    def epi_kv(g):
        p = Rec()
        K, V = ACC[0], ACC[1]; t = vKc
        p(f"v_lshrrev_b32 v{t}, 5, v{vL}\nv_lshlrev_b32 v{t}, 4, v{t}")
        p.begin(); p(f"s_lshl_b32 s{sT2}, s{sR}, 7\ns_add_u32 s{sT2}, s{sT2}, {SC_RS}\nv_add_u32 v{t}, s{sT2}, v{t}"); p.end()
        def rdrl(b, q): p.lds(f"ds_read_b128 {vr(vG8+4*q)}, v{t} offset:{64*b + 32*q}", ("rl", b, q))
        rdrl(0, 0); rdrl(0, 1)
        p(f"v_mov_b32 v{vKa}, {f2u(LN2)}")
        g.ext(p, K, 0, None, False)
        g.ext(p, V, 1024, None, False)
        def chain(x, y, e):
            c = g.phi_chain(x, y, vG8 + (e & 7))
            c[0] += f"\nv_mul_f32 v{V+e}, v{V+e}, v{vG8 + (e & 7)}"
            if e & 7 == 0: c0 = c[0]; c[0] = lambda p: (p.wait_lg(("rl", e >> 3, 0)), p(c0))
            if e & 7 == 4: c0 = c[0]; c[0] = lambda p: (p.wait_lg(("rl", e >> 3, 1)), p(c0))
            if e == 3: c1 = c[1]; c[1] = lambda p: (rdrl(1, 0), p(c1))
            if e == 7: c1 = c[1]; c[1] = lambda p: (rdrl(1, 1), p(c1))
            return c
        g.diag(p, K, 16, chain, vT, lambda b: None)
        for k in range(8): p(f"v_cvt_pk_bf16_f32 v{V+k}, v{V+2*k}, v{V+2*k+1}")
        p(f"v_and_b32 v{t}, 16, v{vL}\nv_cmp_eq_u32 vcc, 0, v{t}\nv_lshrrev_b32 v{t}, 3, v{vL}\nv_lshlrev_b32 v{t}, 13, v{t}\nv_and_b32 v{V+8}, 112, v{vL16}\nv_add_u32 v{t}, v{t}, v{V+8}\nv_mov_b32 v{V+8}, 0x3f803f80")
        for k in range(8): p(f"v_cndmask_b32 v{vT+8+k}, v{V+8}, v{V+k}, vcc")
        for k in range(8): p(f"v_cndmask_b32 v{vG8+k}, v{V+k}, v{V+8}, vcc")
        p.gap(2)
        p(mfma32(K, vT, vT+8, 0)); p.gap(4); p(mfma32(V, vT, vG8, 0)); p.gap(4)
        p(mfma32(K, vT+4, vT+12, K)); p.gap(4); p(mfma32(V, vT+4, vG8+4, V)); p.gap(10)
        for q in range(4):
            if q: p(f"s_add_u32 s{sKVP}, s{sKVP}, 65536")
            p.vmem(f"buffer_store_dwordx4 {vr((K if q < 2 else V)+4*q)}, v{t}, {srd(SWS)}, s{sKVP} offen{g.sc}", "kvst")
        return p.ops
    def bt_setup(g, p):
        t0 = vBt1
        g.tr_inrow(vBt0, t0, None)
        p(f"v_lshrrev_b32 v{t0}, 5, v{vL}\nv_lshl_add_u32 v{vBt0}, v{t0}, 9, v{vBt0}\nv_add_u32 v{vBt0}, s{sW2K}, v{vBt0}\nv_xor_b32 v{vBt1}, 64, v{vBt0}")
        p.win.pop(vBt0, None); p.win.pop(vBt1, None)
    def rdB(g, p, u, dst):
        for t in range(2):
            for n in range(2): p.tr(dst + 4*t + 2*n, (vBt0, vBt1)[t], (u % 9)*16384 + n*1024, ("b", u))
    def preB(g, us):
        r = Rec()
        if not g.fused: return []
        for u in list(us) + [None]:
            if u is not None: r.begin(); r.wait_vm(("B", u)); g.rdB(r, u, BR(u)); r.end()
            if u != us[0]:
                v = (us[-1] if u is None else u - 1)
                r.begin(); r.wait_lg(("b", v)); g.issue_B(r, v + 9, v*16384); r.end()
        return r.ops
    def mm_pass(g, p, al, acc, kind, s, cstile, fillers, dw=1.0):
        steps = [ks for ks in range(32) if kind != "Hh" or (ks & 3) < 2]
        def addr(ks, n):
            kc, kk = ks >> 2, ks & 3
            if kind == "Hh": return vHa, al.base(("Hh", kc >> 1)) + (kc & 1)*4096 + kk*1024 + n*256
            u = ("W", s, kc) if kind == "W" else ("Q", kc)
            return (vWa if kk < 2 else vWb), al.base(u) + (kk & 1)*2048 + n*512
        def caddr(q, n):
            if kind == "Hh": return vHc, al.base(("Hh", q)) + n*256
            u = ("W", s, q) if kind == "W" else ("Q", q)
            return vWc, al.base(u) + n*512
        N = len(steps); NC = N // 4
        def rd(i):
            for n in range(2):
                r, o = addr(steps[i], n); p.tr(vF + 4*(i & 3) + 2*n, r, o, ("w", i))
        def rdc(q):
            for n in range(2):
                r, o = caddr(q, n); p.tr(vCSF + 2*n, r, o, ("c", q))
        for i in range(4): rd(i)
        rdc(0)
        X = os.environ.get("XP", "") if s == 2 else ""
        if "f" in X: g.run(p, fillers[0]) if "F" in X else None; fillers = []
        if "d" in X: p.later = []
        fl = Fill(fillers + [window(g.dmas(al, p.later), 0, dw)], N + NC - 2); p.later = []
        fl.step(p)
        ramp = {0: 3, N*14//32: 2, N*24//32: 1, N*30//32: 0} if RAMP else {}
        for i in range(N):
            if i in ramp: p(f"s_setprio {ramp[i]}")
            p.wait_lg(("w", i))
            p(mfma32(acc, vF + 4*(i & 3), vXF + 4*steps[i], 0 if i == 0 else acc))
            if i + 4 < N: rd(i + 4)
            fl.step(p)
            if i & 3 == 2 and "c" in X: fl.step(p)
            if i & 3 == 2 and "c" not in X:
                q = i >> 2
                p.wait_lg(("c", q))
                p(mfma16(vCS0, vSEL, vCSF, 0 if q == 0 else vCS0))
                if q + 1 < NC: rdc(q + 1)
                fl.step(p)
        fl.drain(p)
        g.cs_write(p, vCS0, cstile)
    def run(g, p, ops):
        for f in ops: f(p)
    def bar(g, paths, al, queue, waits, frees):
        for f in frees: al.rel(f)
        newu = g.plan(al, queue)
        g.nbar += 1; sid = g.nbar
        def go(p, now=True):
            p.wait_lg0()
            g.stamp(p, 2*sid - 9)
            for w in waits: p.wait_vm(w)
            p("s_barrier")
            g.stamp(p, 2*sid - 8)
            p.later = list(newu)
            if now: g.flush(p, al)
        return go
    def flush(g, p, al):
        for u in getattr(p, "later", []): g.issue(p, al, u)
        p.later = []
    def role_H(g, after):
        a = g.a; p = Path(a); al = Alloc()
        a("L_roleH:"); g.nbar = 8; g.atype = False
        g.wdma_voff(vWd, 3584, vT, vT+1)
        a(f"s_mul_i32 s{sWO_}, s{sW}, {8*3584}\ns_sub_u32 s{sT}, s{sT}, 8\ns_mul_i32 s{sT0}, s{sT}, 384\ns_add_u32 s{sWO_}, s{sWO_}, s{sT0}")
        queue = []
        for kc in range(8): queue += [("X", kc), ("W", 0, kc)]
        for s in (1, 2): queue += [("W", s, kc) for kc in range(8)]
        if g.fused: queue += [("B", u) for u in range(9)]
        g.stamp(p, 39)
        g.tables(3584, range(2))
        for u in g.plan(al, queue, PRO_H): g.issue(p, al, u)
        g.stamp(p, 40)
        g.tables(3584, range(2, 8))
        g.early(p)
        for u in g.plan(al, queue, PRO_B-1): g.issue(p, al, u)
        a(f"v_and_b32 v{vT}, 31, v{vL}\nv_lshlrev_b32 v{vT}, 1, v{vT}\ns_lshl_b32 s{sT1}, s{sC}, 6\ns_add_u32 s{sT0}, s{sT0}, s{sT1}")
        a(f"s_mul_i32 s{sT0}, s{sT}, 384\ns_add_u32 s{sT0}, s{sT0}, s{sT1}")
        for s in range(3): p.vmem(f"buffer_load_ushort v{vB1+s}, v{vT}, {srd(SB1)}, s{sT0} offen offset:{128*s}", "b1")
        a(f"s_lshl_b32 s{sHF}, s{sI}, 2\ns_add_u32 s{sHF}, s{sHF}, s{sR}\ns_mul_i32 s{sHF}, s{sHF}, {HF_RT}")
        a(f"s_mul_i32 s{sT0}, s{sT}, {12*1024}\ns_add_u32 s{sHF}, s{sHF}, s{sT0}\ns_lshl_b32 s{sT0}, s{sC}, 11\ns_add_u32 s{sHF}, s{sHF}, s{sT0}")
        g.p1_setup2(False)
        g.stamp(p, 41)
        g.i0(p, al, queue, False)
        S = lambda s: [("W", s, kc) for kc in range(8)]
        g.nonce_pub(p)
        g.bar(None, al, queue, ["b1"] + S(1), [("X", 6), ("W", 0, 6), ("X", 7), ("W", 0, 7)])(p, False)
        g.stats_fin(p, False)
        g.mm_pass(p, al, ACC[1], "W", 1, 1, [g.epi_gelu(ACC[0], 0, vB1, 0)])
        g.bar(None, al, queue, S(2), S(1))(p, False)
        if os.environ.get("LOOPT"):
            p.wait_lg0(); w0 = dict(p.win); p("s_mov_b32 s0, 0\nL_lt:\ns_memtime s[90:91]")
        g.bt_setup(p)
        g.mm_pass(p, al, ACC[0], "W", 2, 2, [g.epi_gelu(ACC[1], 1024, vB1+1, 4096, "hs1") + [lambda p: None]*FRONT, window(g.preB(range(5)), PBW, 1.0)], 0.3)
        if os.environ.get("LOOPT"):
            for r in list(p.win): p.la(r, w0.get(r, 0) << 16)
            p.wait_lg0(True)
            p(f"s_barrier\ns_memtime s[92:93]\ns_waitcnt lgkmcnt(0)\ns_sub_u32 s92, s92, s90\ns_add_u32 s92, s92, s96\ns_add_u32 m0, s0, 50\ns_nop 4\nv_writelane_b32 v{vSTASH}, s92, m0")
            p("s_add_u32 s0, s0, 1\ns_cmp_lt_u32 s0, 3\ns_cbranch_scc1 L_lt")
        g.bar(None, al, queue, ["hs1"], S(2))(p, False)
        ops = g.epi_gelu(ACC[0], 2048, vB1+2, 8192)
        if g.fused: g.put_flag(p, "h1", f"s_mov_b32 s{sT0}, s{sXO}", 16, (1, 0), wave=7); g.kvreduce(p, 0)
        if F1POS == 0: g.flush(p, al)
        g.run(p, ops[:R1POS])
        if g.fused: g.kvreduce(p, 1)
        g.flush(p, al)
        g.run(p, ops[R1POS:])
        if g.fused: g.kvreduce(p, 2)
        after(p, al, queue, "H")
    def role_A(g, after):
        a = g.a; p = Path(a); al = Alloc()
        a("L_roleA:"); g.nbar = 8; g.atype = True
        g.wdma_voff(vWd, 3072, vT, vT+1)
        a(f"s_mul_i32 s{sWO_}, s{sW}, {8*3072}\ns_lshl_b32 s{sT0}, s{sT}, 7\ns_add_u32 s{sWO_}, s{sWO_}, s{sT0}")
        queue = []
        for kc in range(8): queue += [("X", kc), ("KV", kc)]
        queue += [("Q", kc) for kc in range(8)] + [("Hh", k) for k in range(4)]
        if g.fused: queue += [("B", u) for u in range(9)]
        g.stamp(p, 39)
        g.tables(3072, range(2))
        for u in g.plan(al, queue, PRO_A): g.issue(p, al, u)
        g.stamp(p, 40)
        g.tables(3072, range(2, 8))
        g.early(p)
        for u in g.plan(al, queue, PRO_B): g.issue(p, al, u)
        a(f"v_lshrrev_b32 v{vT}, 2, v{vL}\nv_mul_u32_u24 v{vHd}, 3584, v{vT}\nv_and_b32 v{vT}, 3, v{vL}\nv_lshl_add_u32 v{vHd}, v{vT}, 4, v{vHd}")
        a(f"s_lshl_b32 s{sT0}, s{sT}, 6\ns_add_u32 s{sT0}, s{sT0}, 3072\ns_mul_i32 s{sWO2}, s{sR}, {16*3584}\ns_add_u32 s{sWO2}, s{sWO2}, s{sT0}")
        a(f"v_and_b32 v{vT}, 31, v{vL}\nv_lshlrev_b32 v{vT}, 1, v{vT}")
        p.vmem(f"buffer_load_ushort v{vB1}, v{vT}, {srd(SB1)}, s{sT0} offen", "b1")
        a(f"s_lshl_b32 s{sHF}, s{sI}, 2\ns_add_u32 s{sHF}, s{sHF}, s{sR}\ns_lshl_b32 s{sKVP}, s{sHF}, 7\ns_mul_i32 s{sHF}, s{sHF}, {HF_RT}")
        a(f"s_lshl_b32 s{sT0}, s{sT}, 1\ns_add_u32 s{sT0}, s{sT0}, s{sC}\ns_lshl_b32 s{sT0}, s{sT0}, 18\ns_add_u32 s{sKVP}, s{sKVP}, s{sT0}\ns_add_u32 s{sKVP}, s{sKVP}, {WS_KVP}")
        a(f"s_lshl_b32 s{sT0}, s{sT}, 12\ns_add_u32 s{sHF}, s{sHF}, s{sT0}\ns_lshl_b32 s{sT0}, s{sC}, 11\ns_add_u32 s{sHF}, s{sHF}, s{sT0}")
        g.p1_setup2(True)
        g.stamp(p, 41)
        g.i0(p, al, queue, True)
        HH = [("Hh", k) for k in range(4)]; QQ = [("Q", kc) for kc in range(8)]
        g.nonce_pub(p)
        g.bar(None, al, queue, ["b1"] + QQ, [("X", 6), ("KV", 6), ("X", 7), ("KV", 7)])(p, False)
        g.stats_fin(p, True)
        g.mm_pass(p, al, ACC[2], "Q", 0, 2, [window(g.epi_kv(), 0, KVW)])
        for u in QQ: al.rel(u)
        XB = 2*g.AP[1]; assert al.get("xch", 2, [XB]) is not None
        g.bar(None, al, queue, HH + ["kvst"], [])(p, False)
        g.flag_kv(p)
        g.bt_setup(p)
        g.mm_pass(p, al, ACC[0], "Hh", 0, 0, [g.epi_q(ACC[2], 2048, 112*1024), window(g.preB(range(3)), 0.4, 1.0)], 0.3)
        H = ACC[0]; t = 12
        p(f"v_add_u32 v{t}, s{sW2K}, v{vL16}\nv_add_u32 v{t+1}, {XB*SLOT}, v{t}\nv_xor_b32 v{t}, 8192, v{t+1}")
        p(f"s_cmp_eq_u32 s{sC}, 1\ns_cbranch_scc1 L_x1")
        a.fence()
        p(f"ds_write_b128 v{t}, {vr(H+8)}\nds_write_b128 v{t}, {vr(H+12)} offset:1024\ns_branch L_x2\nL_x1:")
        a.fence()
        p(f"ds_write_b128 v{t}, {vr(H)}\nds_write_b128 v{t}, {vr(H+4)} offset:1024\nL_x2:")
        p.lg.append("xw")
        g.bar(None, al, queue, [], HH)(p, False)
        p.lds(f"ds_read_b128 {vr(ACC[1])}, v{t+1}", "xr"); p.lds(f"ds_read_b128 {vr(ACC[1]+4)}, v{t+1} offset:1024", "xr")
        if g.fused:
            p.wait_lg("xr"); al.rel("xch"); p.later += g.plan(al, queue); g.flush(p, al)
            g.run(p, g.preB(range(3, 5)))
        r = Rec(); g.ext(r, H, 0, vB1, True, True); g.run(p, r.ops)
        a.fence()
        p(f"s_cmp_eq_u32 s{sC}, 0\ns_cbranch_scc1 L_x3")
        for k in range(8): p(f"v_mov_b32 v{H+k}, v{H+8+k}")
        p("L_x3:")
        p.wait_lg("xr")
        for k in range(0, 8, 2): p(f"v_pk_add_f32 {vr(H+k,2)}, {vr(H+k,2)}, {vr(ACC[1]+k,2)}")
        p(f"s_lshl_b32 s{sT0}, s{sT}, 11\ns_sub_u32 s{sHF}, s{sHF}, s{sT0}\ns_lshl_b32 s{sT0}, s{sC}, 10\ns_sub_u32 s{sHF}, s{sHF}, s{sT0}")
        r = Rec(); g.diag(r, H, 8, g.gelu_chain, vT, lambda b: g.store_frag(r, vT, 96*1024)); g.run(p, r.ops)
        after(p, al, queue, "A")
    def early(g, p):
        if not g.fused: return
        g.p2_setup_dma()
        p(f"s_lshl_b32 s{sXO}, s{sI}, 4\ns_add_u32 s{sXO}, s{sXO}, s{sT}\ns_lshl_b32 s{sXO}, s{sXO}, 7\ns_add_u32 s{sXO}, s{sXO}, {WS_FLG + (0 if g.atype else 1024)}")
        p("s_mov_b32 s3, 1" if g.atype else f"s_mov_b32 s3, s{sC}")
        p(f"s_or_b32 s{sT0}, s2, s{sW}\ns_cmp_lg_u32 s{sT0}, 0\ns_cbranch_scc1 L_nn{int(g.atype)}")
        p(f"s_memrealtime s[{sT0}:{sT0+1}]\ns_waitcnt lgkmcnt(0)\ns_or_b32 s{sT0}, s{sT0}, 1")
        p(f"v_mov_b32 v{vT}, s{sT0}\nv_mov_b32 v{vT+1}, s{sT0+1}\nv_mov_b32 v{vT+2}, 0")
        p(f"buffer_store_dwordx2 v[{vT}:{vT+1}], v{vT+2}, {srd(SDBG)}, 0 offen sc1")
        p(f"L_nn{int(g.atype)}:")
    def nonce_load(g, p):
        p(f"v_mov_b32 v{vNON+2}, 0")
        p.vmem(f"buffer_load_dwordx2 v[{vNON}:{vNON+1}], v{vNON+2}, {srd(SDBG)}, 0 offen sc1", "non")
    def nonce_pub(g, p):
        if not g.fused: return
        L = f"L_np{int(g.atype)}"
        p.wait_vm("non")
        p(f"s_mov_b32 s{sT1}, {POLLMAX}")
        p(f"{L}:\nv_readfirstlane_b32 s{sT0}, v{vNON}\ns_cmp_lg_u32 s{sT0}, 0\ns_cbranch_scc1 {L}x")
        p(f"s_sleep 2\nbuffer_load_dwordx2 v[{vNON}:{vNON+1}], v{vNON+2}, {srd(SDBG)}, 0 offen sc1\ns_waitcnt vmcnt(0)")
        p(f"s_sub_u32 s{sT1}, s{sT1}, 1\ns_cmp_lg_u32 s{sT1}, 0\ns_cbranch_scc1 {L}\n{L}x:")
        p(f"v_readfirstlane_b32 s{sNON}, v{vNON}\nv_readfirstlane_b32 s{sNON+1}, v{vNON+1}")
    def put_flag(g, p, name, soff_code, t, repl, wave=None, cnt=None):
        if wave is not None: p(f"s_cmp_lg_u32 s{sW}, {wave}")
        else:
            p(f"v_mov_b32 v{t}, {SC_CNT + 4*cnt[0]}\nv_mov_b32 v{t+1}, 1\ns_mov_b64 exec, 1\nds_add_rtn_u32 v{t+1}, v{t}, v{t+1}\ns_mov_b64 exec, -1")
            lg = list(p.lg); p.wait_lg0(True)
            if name == "r": p.lg = lg
            p(f"v_readfirstlane_b32 s{sT0}, v{t+1}\ns_cmp_lg_u32 s{sT0}, {cnt[1]-1}")
        p(f"s_cbranch_scc1 L_nf{name}")
        p(soff_code)
        p(f"v_mov_b32 v{t}, s{sNON}\nv_mov_b32 v{t+1}, s{sNON+1}\nv_lshlrev_b32 v{t+2}, {repl[1]}, v{vL}\ns_mov_b64 exec, {(1 << repl[0]) - 1:#x}")
        p(f"buffer_store_dwordx2 v[{t}:{t+1}], v{t+2}, {srd(SWS)}, s{sT0} offen sc1")
        p(f"s_mov_b64 exec, -1\nL_nf{name}:\ns_nop 3")
    def flag_h(g, p):
        p.wait_vm("hst")
        g.put_flag(p, "h2", f"s_add_u32 s{sT0}, s{sXO}, 32768", 20, (1, 0), cnt=(0, 8))
    def flag_kv(g, p):
        if not g.fused: return
        g.put_flag(p, "kv", f"s_lshl_b32 s{sT0}, s{sT}, 8\ns_add_u32 s{sT0}, s{sT0}, s{sI}\ns_lshl_b32 s{sT0}, s{sT0}, 3\ns_add_u32 s{sT0}, s{sT0}, {WS_FLG + 65536}", 12, (16, 7), wave=0)
    def l2pf(g, p):
        t, t2 = (vB1+1, vB1+2) if g.atype else (vKa, vKb)
        p(f"s_lshr_b32 s{sT0}, s2, 3\ns_lshl_b32 s{sT0}, s{sT0}, 3\ns_add_u32 s{sT0}, s{sT0}, s{sW}\ns_mul_i32 s{sT1}, s{sT0}, 7168\ns_lshl_b32 s{sT0}, s{sT0}, 11")
        p(f"v_min_u32 v{t}, 55, v{vL}\nv_lshlrev_b32 v{t}, 7, v{t}")
        p.vmem(f"buffer_load_dword v{t}, v{t}, {srd(SW2)}, s{sT1} offen", "pf")
        p(f"v_and_b32 v{t2}, 15, v{vL}\nv_lshlrev_b32 v{t2}, 7, v{t2}")
        p.vmem(f"buffer_load_dword v{t2}, v{t2}, {srd(SWO)}, s{sT0} offen", "pf")
    def poll_ld(g, name):
        vd, va, sreg = g.PL[name]
        return f"buffer_load_dwordx2 v[{vd}:{vd+1}], v{va}, {srd(SWS)}, s{sreg} offen sc1"
    def poll_go(g, p, name): p.vmem(g.poll_ld(name), ("opt" if name == "r" else "pl", name))
    def poll(g, p, name):
        L = f"L_pl{name}"; vd = g.PL[name][0]
        p.wait_vm(("opt" if name == "r" else "pl", name))
        p(f"s_mov_b32 s{sT1}, {POLLMAX}")
        p(f"{L}:\nv_cmp_ne_u64 vcc, s[{sNON}:{sNON+1}], v[{vd}:{vd+1}]\ns_nop 1\ns_cmp_eq_u64 vcc, 0\ns_cbranch_scc1 {L}x")
        p(f"s_sleep {SLP}\n{g.poll_ld(name)}\ns_waitcnt vmcnt(0)")
        p(f"s_sub_u32 s{sT1}, s{sT1}, 1\ns_cmp_lg_u32 s{sT1}, 0\ns_cbranch_scc1 {L}\n{L}x:")
    PL = {"h1": (2, 4, 64), "h2": (12, 4, sWO_), "a": (2, 4, sWO2), "k": (12, 5, sHF), "r": (14, 5, 65)}
    def p2_poll_setup(g, p):
        p(f"v_mov_b32 v4, 0\nv_and_b32 v5, 15, v{vL}\nv_lshlrev_b32 v5, 3, v5")
        p(f"s_lshr_b32 s{sWO2}, s{sRB}, 1\ns_lshl_b32 s{sWO2}, s{sWO2}, 4\ns_add_u32 s{sWO2}, s{sWO2}, s{sW}\ns_lshl_b32 s{sWO2}, s{sWO2}, 7")
        p(f"s_add_u32 s64, s{sWO2}, {WS_FLG + 1024}\ns_add_u32 s{sWO2}, s{sWO2}, {WS_FLG + 32768}\ns_add_u32 s{sWO_}, s{sWO2}, 1024")
        p(f"s_lshr_b32 s{sHF}, s{sRB}, 2\ns_lshl_b32 s{sHF}, s{sHF}, 3\ns_add_u32 s{sHF}, s{sHF}, s{sW}\ns_lshl_b32 s{sHF}, s{sHF}, 7\ns_add_u32 s{sHF}, s{sHF}, {WS_FLG + 98304}")
    def after_fused(g, p, al, queue, tag):
        assert not queue and not p.later, queue
        assert [x for x in p.vm if x[0] != "opt"][-1] == "hst" and p.win[vBt0] == 1 and p.win[vBt1] == 1, p.vm
        p.wait_lg0()
        if PRIO: p("s_setprio 3")
        if tag == "A": p("s_branch L_p2")
    def phase1(g, after):
        a = g.a
        g.p1_setup()
        a(f"s_cmp_ge_u32 s{sT}, 8\ns_cbranch_scc1 L_roleH")
        g.role_A(after); g.role_H(after)
    def kvreduce(g, p, st):
        p.wait_lg0() if p.pend else None
        if st == 0: p(f"v_and_b32 v5, 15, v{vL}\nv_lshlrev_b32 v5, 3, v5")
        p(f"s_cmp_lg_u32 s3, 0\ns_cbranch_scc1 L_nored{st}")
        R = 192; t = 16; RK = lambda k: R + 4*k
        if st == 0:
            p(f"s_lshl_b32 s{sKVP}, s{sI}, 2\ns_add_u32 s{sKVP}, s{sKVP}, s{sR}\ns_lshl_b32 s{sT0}, s{sT}, 6\ns_add_u32 s{sKVP}, s{sKVP}, s{sT0}")
            p(f"s_lshr_b32 s65, s{sKVP}, 2\ns_lshl_b32 s65, s65, 7\ns_add_u32 s65, s65, {WS_FLG + 65536}")
            g.poll_go(p, "r")
        if st == 1:
            g.stamp(p, 30); g.poll(p, "r"); g.stamp(p, 31)
            p(f"s_lshl_b32 s{sT0}, s{sKVP}, 13\ns_add_u32 s{sT0}, s{sT0}, {WS_KVP}\ns_add_u32 s{sT1}, s{sT0}, 4096")
            for k in range(8):
                p.vmem(f"buffer_load_dwordx4 {vr(RK(k))}, v{vL16}, {srd(SWS)}, s{sT0 + (k>>2)} offen offset:{(k&3)*1024}{g.sc}", ("opt", "kr", k))
        if st == 2:
            p(f"s_lshr_b32 s{sT1}, s{sI}, 1\ns_xor_b32 s{sT1}, s{sT1}, s{sR}\ns_bitcmp0_b32 s{sT1}, 1\ns_cselect_b32 s{sT1}, {f2u(LN2)}, 1.0")
            p(f"s_and_b32 s{sT0}, s{sKVP}, 0x1f0\ns_lshl_b32 s{sT0}, s{sT0}, 6\ns_and_b32 s{sT2}, s{sKVP}, 7\ns_lshl_b32 s{sT2}, s{sT2}, 7\ns_add_u32 s{sT0}, s{sT0}, s{sT2}")
            p(f"s_and_b32 s{sT2}, s{sKVP}, 8\ns_add_u32 s{sT0}, s{sT0}, s{sT2}\ns_add_u32 s{sT0}, s{sT0}, {WS_KVF}")
            p.wait_vm(("opt", "kr", 7))
            for k in range(1, 8):
                for e in range(4): p(f"v_add_f32 v{R+e}, v{R+e}, v{RK(k)+e}")
            for e in range(4): p(f"v_add_f32_dpp v{R+e}, v{R+e}, v{R+e} row_ror:8 row_mask:0xf bank_mask:0xf")
            for sw in ("16", "32"):
                for e in range(4): p(f"v_mov_b32 v{R+4+e}, v{R+e}")
                for e in range(4): p(f"v_permlane{sw}_swap_b32 v{R+4+e}, v{R+e}")
                for e in range(4): p(f"v_add_f32 v{R+e}, v{R+e}, v{R+4+e}")
            for e in range(4): p(f"v_mul_f32 v{R+e}, s{sT1}, v{R+e}")
            p(f"v_cvt_pk_bf16_f32 v{R}, v{R}, v{R+1}\nv_cvt_pk_bf16_f32 v{R+1}, v{R+2}, v{R+3}\ns_mov_b64 exec, 0xff")
            p.vmem(f"buffer_store_dwordx2 {vr(R,2)}, v{vL16}, {srd(SWS)}, s{sT0} offen{g.sc}", ("opt", "kvf"))
            p("s_mov_b64 exec, -1"); g.stamp(p, 33)
        if st == 3:
            p.wait_vm(("opt", "kvf"))
            g.put_flag(p, "r", f"s_lshr_b32 s{sT0}, s{sKVP}, 2\ns_lshl_b32 s{sT0}, s{sT0}, 3\ns_add_u32 s{sT0}, s{sT0}, {WS_FLG + 98304}", t, (8, 10), cnt=(1, 4))
            g.stamp(p, 32)
        if p.pend:
            lg = list(p.lg); p.wait_lg0(); p.lg = lg
        p(f"L_nored{st}:\ns_nop 3")
    def p2_setup_dma(g):
        a = g.a
        g.wdma_voff(vBd0, 1024, vT, vT+1)
        a(f"v_add_u32 v{vBd1}, 7168, v{vBd0}")
        a(f"s_lshl_b32 s{sB0}, s{sN}, 7")
    def issue_B(g, p, u, b):
        if u < 12:   mul, add, sr = 12*16384, u*16384, SW2
        elif u < 14: mul, add, sr = 2*16384, (96 + u - 12)*16384, SW2
        else:        mul, add, sr = 4*16384, (u - 14)*16384, SWO
        p(f"s_add_u32 m0, s{sW2K}, {b}\ns_mul_i32 s{sT0}, s{sW}, {mul}\ns_add_u32 s{sT0}, s{sT0}, s{sB0}\ns_add_u32 s{sT0}, s{sT0}, {add}")
        p.vmem(f"buffer_load_dwordx4 v{vBd0}, {srd(sr)}, s{sT0} offen lds", ("B", u))
        p.vmem(f"buffer_load_dwordx4 v{vBd1}, {srd(sr)}, s{sT0} offen offset:1024 lds", ("B", u))
    def phase2(g, p, bpos, pending):
        a = g.a
        AC = lambda t, m: 192 + 16*(2*t + m)
        BJ = lambda k: 104 + 8*(k & 1)
        ND = 8
        AR = lambda u, m: 40 + 8*(u % ND) + 4*m
        KVF = 24
        vA1, vO = 8, 11
        vXR, vB2R = 12, 16
        t0, t1 = 20, 21
        if g.stamps: p(f"v_mov_b32 v23, v{vSTASH}"); p.stash = 23
        g.stamp(p, 19)
        for u, b in pending:
            bpos[u] = b; g.issue_B(p, u, b)
        if g.fused: g.p2_poll_setup(p); g.poll_go(p, "h1")
        p(f"v_add_u32 v{vA1}, {HF_RT}, v{vL16}")
        p(f"s_mul_i32 s{sA0}, s{sRB}, {2*HF_RT}")
        def loadA(u):
            if u < 12:   mul, add = 12*1024, u*1024
            elif u < 14: mul, add = 2*1024, (96 + u - 12)*1024
            else:        mul, add = 4*1024, (112 + u - 14)*1024
            p(f"s_mul_i32 s{sT0}, s{sW}, {mul}\ns_add_u32 s{sT0}, s{sT0}, s{sA0}\ns_add_u32 s{sT0}, s{sT0}, {add}")
            p.vmem(f"buffer_load_dwordx4 {vr(AR(u,0))}, v{vL16}, {srd(SWS)}, s{sT0} offen{ASC}", ("A", u))
            p.vmem(f"buffer_load_dwordx4 {vr(AR(u,1))}, v{vA1}, {srd(SWS)}, s{sT0} offen{ASC}", ("A", u))
        rdB = lambda u, dst: g.rdB(p, u, dst)
        g.flag_h(p); g.kvreduce(p, 3); g.stamp(p, 18)
        if PRIO: p("s_setprio 0")
        for u in range(5, 9): rdB(u, BR(u))
        p.wait_lg0()
        for u in range(5, 5 + NB1): g.issue_B(p, u + 9, u*16384)
        g.poll(p, "h1"); g.stamp(p, 17)
        for k in range(4): loadA(k)
        for k in range(4, ND): loadA(k)
        for u in range(5 + NB1, 9): g.issue_B(p, u + 9, u*16384)
        g.stamp(p, 20)
        if g.fused: g.poll_go(p, "h2")
        def loadE():
            p(f"v_lshrrev_b32 v{t0}, 3, v{vL}\nv_lshlrev_b32 v{vO}, 10, v{t0}\nv_and_b32 v{t0}, 7, v{vL}\nv_lshlrev_b32 v{t0}, 4, v{t0}\nv_add_u32 v{vO}, v{vO}, v{t0}")
            p(f"s_lshl_b32 s{sT2}, s{sRB}, 16\ns_lshl_b32 s{sT1}, s{sW}, 13\ns_add_u32 s{sT2}, s{sT2}, s{sT1}\ns_add_u32 s{sT2}, s{sT2}, s{sB0}")
            p.vmem(f"buffer_load_dwordx4 {vr(vXR)}, v{vO}, {srd(SX)}, s{sT2} offen", "xr")
            p.vmem(f"buffer_load_dwordx4 {vr(vB2R)}, v{t0}, {srd(SB2)}, s{sB0} offen", "xr")
        def loadKV():
            p(f"s_lshl_b32 s{sT0}, s{sW}, 12\ns_add_u32 s{sT0}, s{sT0}, {WS_KVF}")
            for k in range(4): p.vmem(f"buffer_load_dwordx4 {vr(KVF+4*k)}, v{vL16}, {srd(SWS)}, s{sT0} offen offset:{k*1024}{g.sc}", "kvf")
        for u in range(18):
            if u == 8:
                p.wait_vm(("B", 9)); rdB(9, BJ(9))
            if 9 <= u < 17:
                p.wait_vm(("B", u+1)); rdB(u+1, BJ(u+1))
            if u == 11:
                if g.fused: g.poll(p, "k")
                loadKV(); loadE()
            p.wait_vm(("A", u))
            if u in (0, 4, 8, 12, 14, 17): g.stamp(p, {0:21, 4:22, 8:23, 12:24, 14:25, 17:26}[u])
            bf = BR(u) if u < 9 else BJ(u)
            if u >= 14:
                p.wait_vm("kvf")
                hd = u - 14
                for m in range(2):
                    D = 120 + 16*m
                    p(mfma32(D, KVF + 4*hd, AR(u, m), 0))
                for m in range(2):
                    D = 120 + 16*m
                    num, den = (D, D+8) if hd % 2 == 0 else (D+8, D)
                    p(f"v_add_f32 v{den}, {f2u(1e-6)}, v{den}\nv_rcp_f32 v{den}, v{den}")
                    for k in range(8): p(f"v_mul_f32 v{num+k}, v{num+k}, v{den}")
                    for k in range(4): p(f"v_cvt_pk_bf16_f32 v{AR(u,m)+k}, v{num+2*k}, v{num+2*k+1}")
            if u >= 9: p.wait_lg(("b", u))
            for t in range(2):
                for m in range(2):
                    p(mfma32(AC(t, m), bf + 4*t, AR(u, m), 0 if u == 0 else AC(t, m)))
            if g.fused:
                if u == H2U: g.poll(p, "h2"); [loadA(k + ND) for k in range(u)]
                if u == 4: g.poll(p, "a")
            if u + ND < 18 and (u >= H2U or not g.fused): loadA(u + ND)
            if g.fused:
                if u == H2U: g.poll_go(p, "a")
                if u == 8: g.poll_go(p, "k")

        vb = 22
        p(f"v_and_b32 v{t0}, 15, v{vL}\nv_lshrrev_b32 v{t1}, 5, v{vL}\nv_xor_b32 v{t0}, v{t0}, v{t1}\nv_lshlrev_b32 v{vb}, 4, v{t0}")
        p(f"v_and_b32 v{t0}, 7, v{vL}\nv_lshl_add_u32 v{vb}, v{t0}, 8, v{vb}\nv_bfe_u32 v{t0}, v{vL}, 3, 2\nv_lshl_add_u32 v{vb}, v{t0}, 14, v{vb}\nv_add_u32 v{vb}, s{sW2K}, v{vb}")
        k = 0
        for m in range(2):
            for t in range(2):
                for qd in range(4):
                    r = KVF + (k & 7); k += 1
                    p(f"v_xor_b32 v{r}, {((8*t + 2*qd) << 4) | (m << 16)}, v{vb}")
                    p.lds(f"ds_write_b128 v{r}, {vr(AC(t,m) + 4*qd)}", "pw")
        p(f"v_lshrrev_b32 v{t0}, 3, v{vL}\nv_and_b32 v{t1}, 7, v{vL}\nv_lshlrev_b32 v{t1}, 1, v{t1}\nv_xor_b32 v{t1}, v{t1}, v{t0}")
        p(f"s_and_b32 s{sT0}, s{sW}, 1\ns_lshl_b32 s{sT0}, s{sT0}, 3\nv_xor_b32 v{t1}, s{sT0}, v{t1}\nv_lshlrev_b32 v{t1}, 4, v{t1}")
        p(f"v_lshl_add_u32 v{t1}, v{t0}, 8, v{t1}\ns_lshl_b32 s{sT0}, s{sW}, 14\nv_add_u32 v{t1}, s{sT0}, v{t1}\nv_xor_b32 v{t0}, 16, v{t1}")
        p.wait_lg0(); g.stamp(p, 27); p("s_barrier"); g.stamp(p, 28)
        for s in range(8):
            p.lds(f"ds_read_b128 {vr(40 + 8*s)}, v{t1} offset:{s*2048}", ("pr", s))
            p.lds(f"ds_read_b128 {vr(44 + 8*s)}, v{t0} offset:{s*2048}", ("pr", s))
        p.wait_vm("xr")
        E = 104
        for k in range(4):
            p(f"v_lshlrev_b32 v{E+2*k}, 16, v{vXR+k}\nv_and_b32 v{E+2*k+1}, 0xffff0000, v{vXR+k}")
            p(f"v_lshlrev_b32 v{E+8+2*k}, 16, v{vB2R+k}\nv_and_b32 v{E+8+2*k+1}, 0xffff0000, v{vB2R+k}")
        for k in range(0, 8, 2): p(f"v_pk_add_f32 {vr(E+k,2)}, {vr(E+k,2)}, {vr(E+8+k,2)}")
        for s in range(8):
            p.wait_lg(("pr", s))
            for k in range(0, 8, 2): p(f"v_pk_add_f32 {vr(E+k,2)}, {vr(E+k,2)}, {vr(40+8*s+k,2)}")
        for k in range(4): p(f"v_cvt_pk_bf16_f32 v{E+8+k}, v{E+2*k}, v{E+2*k+1}")
        p.vmem(f"buffer_store_dwordx4 {vr(E+8)}, v{vO}, {srd(SOUT)}, s{sT2} offen", "out")
        g.stamp_out(p, 0 if g.fused else 2)
        p("s_endpgm")
vBd0, vBd1 = 7, 0
HDR = open(f"cdna_kernels/{KN}.s.ref").read().split("; @launch")[0]
def kdesc(name):
    return f""".amdhsa_kernel {name}
  .amdhsa_next_free_vgpr 256
  .amdhsa_next_free_sgpr 102
  .amdhsa_accum_offset 256
  .amdhsa_group_segment_fixed_size 0
  .amdhsa_kernarg_size 88
  .amdhsa_user_sgpr_count 2
  .amdhsa_user_sgpr_kernarg_segment_ptr 1
  .amdhsa_system_sgpr_workgroup_id_x 1
.end_amdhsa_kernel
"""
def khead(name): return f".globl {name}\n.p2align 8\n.type {name},@function\n{name}:\n"
def build3():
    names = [KN + "_kernel", "kvr_kernel", "g2_kernel"]
    out = HDR
    out += f"; @launch kernel={names[0]} grid=(256,1,1) block=(512,1,1) lds=163840\n"
    out += f"; @launch kernel={names[1]} grid=(128,1,1) block=(64,1,1) lds=0\n"
    out += f"; @launch kernel={names[2]} grid=(256,1,1) block=(512,1,1) lds=163840\n"
    out += '.amdgcn_target "amdgcn-amd-amdhsa--gfx950"\n.text\n'
    g = Gen(); g.prologue(256)
    g.phase1(lambda p, al, q, tag: (g.stamp_out(p, 0), p("s_endpgm")))
    g.a("L_exit:\ns_endpgm")
    out += khead(names[0]) + g.a.finish()
    g = Gen(); g.prologue(128)
    g.a(f"s_and_b32 s{sI}, s2, 15\ns_lshr_b32 s{sT}, s2, 4")
    pp = Path(g.a); g.kvreduce(pp, sI, sT); g.stamp_out(pp, 1); g.a("L_exit:\ns_endpgm")
    out += khead(names[1]) + g.a.finish().replace("L_exit", "L_exit1")
    g = Gen(); g.prologue(256); g.p2_setup_dma()
    g.phase2(Path(g.a), {}, [(u, u*16384) for u in range(9)]); g.a("L_exit:\ns_endpgm")
    out += khead(names[2]) + g.a.finish().replace("L_exit", "L_exit2")
    out += '.section .rodata,"a"\n.p2align 6\n' + "".join(kdesc(n) + ".p2align 6\n" for n in names)
    return out
def build1():
    name = KN + "_kernel"
    out = HDR + "; @launch grid=(256,1,1) block=(512,1,1) lds=163840\n"
    out += '.amdgcn_target "amdgcn-amd-amdhsa--gfx950"\n.text\n'
    g = Gen(True); g.prologue(256)
    g.phase1(g.after_fused)
    g.a("L_p2:"); g.a.fence()
    p = Path(g.a); p.vm = ["hst"]; p.win = {vBt0: 1, vBt1: 1}
    g.phase2(p, {u: u*16384 for u in range(9)}, [])
    g.a("L_exit:\ns_endpgm")
    out += khead(name) + g.a.finish()
    out += '.section .rodata,"a"\n.p2align 6\n' + kdesc(name)
    return out
if __name__ == "__main__":
    mode = sys.argv[1] if len(sys.argv) > 1 else "3"
    dst = sys.argv[2] if len(sys.argv) > 2 else f"cdna_kernels/{KN}.s"
    open(dst, "w").write(build3() if mode == "3" else build1())
```

```python
import sys, copy, struct
sys.path.insert(0, "dev")
from asmb import Asm
KN = "parallel_sum__linear_attn_block__dense_activation_gelu__prompt"
def f2u(x): return "0x%08x" % struct.unpack("<I", struct.pack("<f", x))[0]
LOG2E = 1.4426950408889634; LN2 = 0.6931471805599453
GC0 = -2*0.7978845608028654*LOG2E; GC1 = GC0*0.044715
WS_HF = 0; HF_RT = 144*1024
WS_KVP = 10 << 20
WS_KVF = 14 << 20
WS_FLG = (14 << 20) + (64 << 10)
WS_STAMP = 15 << 20
WS_SIZE = 17 << 20
import os
LIM_H = int(os.environ.get('LIM_H', 5)); LIM_A = int(os.environ.get('LIM_A', 6)); PRO_H = int(os.environ.get('PRO_H', 3)); PRO_A = int(os.environ.get('PRO_A', 4)); PRO2 = int(os.environ.get('PRO2', 4)); PFK = int(os.environ.get('PFK', 7)); FLUSH1 = int(os.environ.get('FLUSH1', 0)); RAMP = int(os.environ.get('RAMP', 0)); NB1 = int(os.environ.get('NB1', 2)); APF = int(os.environ.get('APF', 0)); REDP = int(os.environ.get('REDP', 1)); SLP = int(os.environ.get('SLP', 4)); FRONT = int(os.environ.get('FRONT', 40)); FRONTK = int(os.environ.get('FRONTK', 30)); F1POS = int(os.environ.get('F1POS', 0)); PRIO = int(os.environ.get('PRIO', 2)); RS = [int(x) for x in os.environ.get('RS', '1,1').split(',')]; H2U = int(os.environ.get('H2U', 0)); H1L = int(os.environ.get('H1L', 1)); PBW = float(os.environ.get('PBW', 0.45)); FKW = float(os.environ.get('FKW', -1)); KVW = float(os.environ.get('KVW', 0.8)); R1POS = int(os.environ.get('R1POS', 80)); DEFER = int(os.environ.get('DEFER', 0)); MID = int(os.environ.get('MID', 0)); HORD = [0,1,2,3,4]; OSC = os.environ.get('OSC', ''); NPA = int(os.environ.get('NPA', 3)); NA1 = int(os.environ.get('NA1', 4)); H1POS = int(os.environ.get('H1POS', -20)); BLATE = [int(x) for x in os.environ.get('BLATE', '0,1,3,5').split(',') if x]; KU = int(os.environ.get('KU', 10)); NF1 = int(os.environ.get('NF1', 2)); H1E = int(os.environ.get('H1E', 0)); ASC = os.environ.get('ASC', ' sc1'); PRO_B = int(os.environ.get('PRO_B', 4))
STAMPS = int(os.environ.get("STAMPS", "0")); STAMPI = "s_memrealtime" if STAMPS == 1 else "s_memtime"
SLOT = 8192; NSLOT = 19; SCR = 19*SLOT
SC_STAT = SCR; SC_CS = SCR + 4096; SC_RS = SCR + 7168; SC_CNT = SCR + 7680
SX, SQ, S1, SWS, SW2, SWO, SOUT, SB1, SB2, SDBG = 4, 8, 12, 16, 20, 24, 28, 32, 36, 40
sW, sR, sC, sI, sT = 44, 45, 46, 47, 48
sW1K, sW2K, sXO, sWO_, sWO2, sHF, sKVP, sT0, sT1, sT2 = 49, 50, 51, 52, 53, 54, 55, 56, 57, 58
sRB, sN, sA0, sB0, sROT = 59, 60, 61, 62, 63
sTX, sTW = 64, 72
sNON = 94
POLLMAX = 8000
def srd(n): return f"s[{n}:{n+3}]"
def vr(a, n=4): return f"v[{a}:{a+n-1}]"
vL, vWd, vHd, vL16 = 1, 4, 5, 6
vHa, vHc = 2, 3
vG8 = 8
vXA, vX0, vX1, vS, vQ = 8, 12, 13, 14, 15
vWa, vWb, vWc = 16, 17, 18
vKa, vKb, vKc = 19, 20, 21
vC0, vC1, vIRS, vSTASH, vRL = 22, 23, 24, 25, 26
vRS = 55
vB1 = 27
vCSa, vCSr = 30, 31
vXE = 32
vSEL = 36
vCS0, vCS1 = 40, 44
vT = 48
vF = 64
ACC = [80, 96, 112]
vNON = 32
vCSF = 44
vXF = 128
class Path:
    def __init__(s, a): s.a = a; s.vm = []; s.lg = []; s.win = {}; s.pend = []; s.stash = vSTASH
    def fork(s):
        p = Path(s.a); p.vm = list(s.vm); p.lg = list(s.lg); p.win = dict(s.win); p.pend = list(s.pend); p.later = list(getattr(s, 'later', [])); p.stash = s.stash; return p
    def __call__(s, t): s.a(t)
    def vmem(s, t, tag=None): s.a(t); s.vm.append(tag)
    def lds(s, t, tag=None): s.a(t); s.lg.append(tag)
    def _cnt(s, q, tag):
        idx = [k for k, x in enumerate(q) if x == tag]
        if not idx: return None
        return len(q) - 1 - idx[-1]
    def wait_vm(s, tag):
        isopt = lambda x: isinstance(x, tuple) and x[0] == "opt"
        idx = [k for k, x in enumerate(s.vm) if x == tag]
        if not idx: return
        later = s.vm[idx[-1]+1:]
        n = len(later) if isopt(tag) else sum(1 for x in later if not isopt(x))
        s.a(f"s_waitcnt vmcnt({min(n, 63)})")
        s.vm = ([x for x in s.vm[:idx[-1]+1] if not isopt(x)] if isopt(tag) else []) + later
    def wait_lg(s, tag):
        n = s._cnt(s.lg, tag)
        if n is None: return
        n = min(n, 15); s.a(f"s_waitcnt lgkmcnt({n})"); s.lg = s.lg[len(s.lg)-n:] if n else []
    def wait_lg0(s, force=False):
        if s.lg or force or s.pend: s.a("s_waitcnt lgkmcnt(0)"); s.lg = []
        for idx, r in s.pend: s.a(f"v_writelane_b32 v{s.stash}, s{r}, {idx}")
        s.pend = []
    def wait_vm0(s):
        s.a("s_waitcnt vmcnt(0)"); s.vm = []
    def la(s, reg, off):
        w = off >> 16; cur = s.win.get(reg, 0)
        if w != cur:
            s.a(f"v_add_u32 v{reg}, {((w-cur) << 16) & 0xffffffff:#x}, v{reg}"); s.win[reg] = w
        return f"v{reg}", off & 0xffff
    def tr(s, dst, reg, off, tag):
        r, o = s.la(reg, off); s.lds(f"ds_read_b64_tr_b16 {vr(dst,2)}, {r} offset:{o}", tag)
    def rd128(s, dst, reg, off, tag):
        r, o = s.la(reg, off); s.lds(f"ds_read_b128 {vr(dst)}, {r} offset:{o}", tag)
class Rec:
    def __init__(s): s.ops = []; s.grp = None
    def _add(s, f):
        if s.grp is not None: s.grp.append(f)
        else: s.ops.append(f)
    def begin(s): s.grp = []
    def end(s):
        gl = s.grp; s.grp = None; s.ops.append(lambda p: [f(p) for f in gl])
    def __call__(s, t):
        for l in t.split("\n"):
            if l.strip(): s._add(lambda p, l=l: p(l))
    def vmem(s, t, tag=None): s._add(lambda p: p.vmem(t, tag))
    def lds(s, t, tag=None): s._add(lambda p: p.lds(t, tag))
    def wait_lg(s, tag): s._add(lambda p: p.wait_lg(tag))
    def wait_vm(s, tag): s._add(lambda p: p.wait_vm(tag))
    def tr(s, dst, reg, off, tag): s._add(lambda p: p.tr(dst, reg, off, tag))
    def gap(s, n):
        for _ in range(n): s._add(lambda p: None)
class Fill:
    def __init__(s, lists, nsteps): s.l = [[x, 0] for x in lists if x]; s.n = nsteps; s.k = 0
    def step(s, p):
        s.k += 1
        for e in s.l:
            tgt = min(len(e[0]), -(-len(e[0]) * s.k // s.n))
            while e[1] < tgt: e[0][e[1]](p); e[1] += 1
    def drain(s, p):
        for e in s.l:
            while e[1] < len(e[0]): e[0][e[1]](p); e[1] += 1
def window(ops, a, b):
    if not ops: return ops
    n = len(ops) / (b - a); return [lambda p: None]*int(n*a) + ops + [lambda p: None]*int(n*(1-b))
vBt0, vBt1 = 9, 10
BR = lambda u: 128 + 8*u if u < 8 else 120
class Alloc:
    def __init__(s): s.free = [True]*NSLOT; s.pos = {}; s.gone = set()
    def get(s, name, n, cand):
        for p in cand:
            if p + n <= NSLOT and all(s.free[p:p+n]):
                for q in range(p, p+n): s.free[q] = False
                s.pos[name] = (p, n)
                if os.environ.get("TRACE"): print("alloc", name, p)
                return p
        return None
    def rel(s, name):
        if name in s.gone: return
        s.gone.add(name); p, n = s.pos[name]
        for q in range(p, p+n): s.free[q] = True
    def base(s, name): return s.pos[name][0]*SLOT
def mfma32(d, a, b, c): return f"v_mfma_f32_32x32x16_bf16 {vr(d,16)}, {vr(a)}, {vr(b)}, {c if c == 0 else vr(c,16)}"
def mfma16(d, a, b, c): return f"v_mfma_f32_16x16x32_bf16 {vr(d,4)}, {vr(a)}, {vr(b)}, {c if c == 0 else vr(c,4)}"

class Gen:
    def __init__(g, fused=False):
        g.stamps = STAMPS; g.a = Asm(); g.fused = fused; g.sc = " sc1" if fused else ""
    def stamp(g, p, idx):
        if not g.stamps: return
        if len(p.pend) == 7: p.wait_lg0(True)
        r = 80 + 2*len(p.pend); p(f"{STAMPI} s[{r}:{r+1}]"); p.pend.append((idx, r))
    def stamp_out(g, p, region):
        if not g.stamps: return
        g.stamp(p, 63)
        p("s_memtime s[100:101]"); p.wait_lg0(True)
        p(f"s_sub_u32 s100, s100, s96\nv_writelane_b32 v{p.stash}, s100, 62")
        p(f"s_lshl_b32 s{sT0}, s2, 3\ns_add_u32 s{sT0}, s{sT0}, s{sW}\ns_lshl_b32 s{sT0}, s{sT0}, 8\ns_add_u32 s{sT0}, s{sT0}, {WS_STAMP + region*(512<<10)}")
        p(f"v_lshlrev_b32 v{vT+1}, 2, v{vL}")
        p.vmem(f"buffer_store_dword v{p.stash}, v{vT+1}, {srd(SWS)}, s{sT0} offen")
    def prologue(g, nwg):
        a = g.a
        a(f"s_cmp_ge_u32 s2, {nwg}\ns_cbranch_scc1 L_exit")
        if g.stamps: a("s_memrealtime s[98:99]\ns_memtime s[96:97]")
        a("s_load_dwordx16 s[64:79], s[0:1], 0\ns_load_dwordx4 s[80:83], s[0:1], 64\ns_load_dwordx2 s[84:85], s[0:1], 80")
        a(f"v_lshrrev_b32 v2, 6, v0\nv_and_b32 v{vL}, 63, v0\nv_readfirstlane_b32 s{sW}, v2")
        a(f"s_and_b32 s{sR}, s{sW}, 3\ns_lshr_b32 s{sC}, s{sW}, 2\ns_lshl_b32 s{sW1K}, s{sW}, 10\ns_lshl_b32 s{sW2K}, s{sW}, 11")
        a(f"s_and_b32 s{sT0}, s2, 7\ns_lshr_b32 s{sT1}, s2, 3")
        a(f"s_lshr_b32 s{sROT}, s{sT1}, 2\ns_and_b32 s{sI}, s{sT0}, 1\ns_lshl_b32 s{sI}, s{sI}, 3\ns_add_u32 s{sI}, s{sI}, s{sROT}")
        a(f"s_and_b32 s{sT}, s{sT0}, 6\ns_and_b32 s{sT2}, s{sT1}, 1\ns_add_u32 s{sT}, s{sT}, s{sT2}\ns_and_b32 s{sT2}, s{sT1}, 2\ns_lshl_b32 s{sT2}, s{sT2}, 2\ns_add_u32 s{sT}, s{sT}, s{sT2}")
        a(f"s_and_b32 s{sT2}, s{sT1}, 3\ns_lshl_b32 s{sT2}, s{sT2}, 1\ns_add_u32 s{sROT}, s{sROT}, s{sT2}")
        a(f"s_lshr_b32 s{sRB}, s{sT1}, 3\ns_lshl_b32 s{sT2}, s{sT0}, 2\ns_add_u32 s{sRB}, s{sRB}, s{sT2}\ns_and_b32 s{sN}, s{sT1}, 7")
        a(f"v_lshlrev_b32 v{vL16}, 4, v{vL}")
        a("s_waitcnt lgkmcnt(0)")
        for d, p, n in ((SX,64,2048*1024),(SQ,66,512*3072),(SWO,68,512*1024),(S1,72,512*3584),(SB1,74,3584),(SW2,76,1792*1024),
                        (SB2,78,1024),(SOUT,80,2048*1024),(SDBG,82,256),(SWS,84,WS_SIZE)):
            a(f"s_mov_b32 s{d}, s{p}\ns_mov_b32 s{d+1}, s{p+1}\ns_mov_b32 s{d+2}, {n}\ns_mov_b32 s{d+3}, 0x00020000")
        if g.stamps:
            a(f"v_mov_b32 v{vSTASH}, 0\nv_writelane_b32 v{vSTASH}, s{98 if STAMPS == 1 else 96}, 0")
    def wdma_voff(g, dst, stride, t0, t1):
        a = g.a
        a(f"v_lshrrev_b32 v{t0}, 3, v{vL}\nv_mul_u32_u24 v{dst}, {stride}, v{t0}")
        a(f"v_lshrrev_b32 v{t0}, 2, v{vL}\nv_and_b32 v{t0}, 4, v{t0}\nv_and_b32 v{t1}, 7, v{vL}\nv_xor_b32 v{t0}, v{t0}, v{t1}")
        a(f"v_lshl_add_u32 v{dst}, v{t0}, 4, v{dst}")
    def tr_inrow(g, dst, t0, t1):
        a = g.a
        a(f"v_and_b32 v{dst}, 16, v{vL}\nv_lshlrev_b32 v{dst}, 1, v{dst}\nv_and_b32 v{t0}, 3, v{vL}\nv_lshl_add_u32 v{dst}, v{t0}, 3, v{dst}")
        a(f"v_and_b32 v{t0}, 8, v{vL}\nv_lshl_add_u32 v{dst}, v{t0}, 3, v{dst}")
        a(f"v_bfe_u32 v{t0}, v{vL}, 2, 2\nv_lshl_add_u32 v{dst}, v{t0}, 7, v{dst}")
    def tables(g, stride, kcs):
        for kc in kcs:
            g.a(f"s_add_u32 s{sT0}, s{sROT}, {kc}\ns_and_b32 s{sT0}, s{sT0}, 7\ns_lshl_b32 s{sT1}, s{sT0}, 7\ns_add_u32 s{sTX+kc}, s{sXO}, s{sT1}")
            g.a(f"s_mul_i32 s{sT1}, s{sT0}, {64*stride}\ns_add_u32 s{sTW+kc}, s{sWO_}, s{sT1}")
    def issue(g, p, al, u):
        k = u[0]; b = al.base(u)
        if k == "X":
            p(f"s_add_u32 m0, s{sW2K}, {b}")
            p.vmem(f"buffer_load_dwordx4 v{vX0}, {srd(SX)}, s{sTX+u[1]} offen lds", u)
            p.vmem(f"buffer_load_dwordx4 v{vX1}, {srd(SX)}, s{sTX+u[1]} offen offset:1024 lds", u)
        elif k == "W":
            p(f"s_add_u32 m0, s{sW1K}, {b}\ns_add_u32 s{sT0}, s{sTW+u[2]}, {u[1]*128}")
            p.vmem(f"buffer_load_dwordx4 v{vWd}, {srd(S1)}, s{sT0} offen lds", u)
        elif k == "KV":
            p(f"s_add_u32 m0, s{sW2K}, {b}\ns_add_u32 s{sT0}, s{sTW+u[1]}, 1024")
            p.vmem(f"buffer_load_dwordx4 v{vWd}, {srd(SQ)}, s{sT0} offen lds", u)
            p.vmem(f"buffer_load_dwordx4 v{vWd}, {srd(SQ)}, s{sT0} offen offset:1024 lds", u)
        elif k == "Q":
            p(f"s_add_u32 m0, s{sW1K}, {b}")
            p.vmem(f"buffer_load_dwordx4 v{vWd}, {srd(SQ)}, s{sTW+u[1]} offen lds", u)
        elif k == "Hh":
            p(f"s_add_u32 m0, s{sW1K}, {b}\ns_add_u32 s{sT0}, s{sROT}, s{sC}\ns_add_u32 s{sT0}, s{sT0}, {2*u[1]}\ns_and_b32 s{sT0}, s{sT0}, 7")
            p(f"s_mul_i32 s{sT0}, s{sT0}, {64*3584}\ns_add_u32 s{sT0}, s{sT0}, s{sWO2}")
            p.vmem(f"buffer_load_dwordx4 v{vHd}, {srd(S1)}, s{sT0} offen lds", u)
        elif k == "B":
            g.issue_B(p, u[1], b)
    USZ = {"X":2, "W":1, "KV":2, "Q":1, "Hh":1, "B":2}
    HP = {1:0, 3:1, 4:2, 5:3, 6:4, 7:5, 8:6, 0:7, 2:8}
    AP = {4:0, 5:1, 6:2, 7:3, 8:4, 0:5, 1:6, 2:7, 3:8}
    def pref(g, u):
        k = u[0]; M = g.AP if g.atype else g.HP
        P = lambda x: 2*M[x]
        both = lambda L: [P(x) + e for x in L for e in range(2)]
        if k == "B": return [2*u[1]]
        if k == "X": return [P(([0,2,4,6,8,1,3,5] if g.atype else [0,1,3,4,6,7,0,1])[u[1]])]
        if k == "KV": return [P([1,3,5,7,0,2,4,6][u[1]])]
        if k == "W":
            if u[1] == 0: return [[P(2), P(2)+1, P(5), P(5)+1, P(8), P(8)+1, 18, P(2)][u[2]]]
            return [both([3,4,5,6])[u[2]]] if u[1] == 1 else [P(2)+1] + both([7,8,0]) + [18]
        if k == "Hh": return both([2,3])
        if k == "Q": return [(both([7,8]) + [18] + both([0]) + [P(1)])[u[1]]]
    def hold(g, u): return DEFER and g.nbar == 8 and (u[0] == "Hh" or (u[0] == "W" and u[1] == 2))
    def dmas(g, al, units):
        r = Rec()
        for u in units: r.begin(); g.issue(r, al, u); r.end()
        return r.ops
    def plan(g, al, queue, limit=99):
        out = []; blocked = set()
        for u in list(queue):
            n = g.USZ[u[0]]
            if n > limit: break
            cand = [c for c in g.pref(u) if not any(q in blocked for q in range(c, c+n))]
            if g.hold(u) or al.get(u, n, cand) is None:
                if u[0] == "B": continue
                pf = g.pref(u)
                for c in pf: blocked.update(range(c, c+n))
                continue
            out.append(u); queue.remove(u); limit -= n
        return out
    def p1_setup(g):
        a = g.a; t0, t1 = vT, vT+1
        a(f"v_lshrrev_b32 v{t0}, 4, v{vL}\nv_and_b32 v{t1}, 7, v{vL}\nv_xor_b32 v{t0}, v{t0}, v{t1}\nv_lshlrev_b32 v{t0}, 4, v{t0}")
        a(f"v_lshrrev_b32 v{t1}, 3, v{vL}\nv_lshl_add_u32 v{vX0}, v{t1}, 10, v{t0}")
        a(f"v_xor_b32 v{vX1}, 64, v{vX0}\nv_add_u32 v{vX1}, 7168, v{vX1}")
        a(f"s_lshl_b32 s{sXO}, s{sI}, 17\ns_lshl_b32 s{sT0}, s{sW}, 14\ns_add_u32 s{sXO}, s{sXO}, s{sT0}")
    def p1_setup2(g, atype):
        a = g.a; t0, t1, t2 = vT, vT+1, vT+2
        a(f"v_and_b32 v{t0}, 31, v{vL}\nv_lshlrev_b32 v{t1}, 7, v{t0}")
        a(f"v_bfe_u32 v{t0}, v{vL}, 1, 3\nv_lshrrev_b32 v{t2}, 5, v{vL}\nv_xor_b32 v{t0}, v{t0}, v{t2}")
        a(f"v_lshl_add_u32 v{t1}, v{t0}, 4, v{t1}\ns_lshl_b32 s{sT0}, s{sR}, 12\nv_add_u32 v{t1}, s{sT0}, v{t1}")
        a(f"s_lshl_b32 s{sT0}, s{sC}, 6\nv_xor_b32 v{vXA}, s{sT0}, v{t1}")
        for kk in range(1, 4): a(f"v_xor_b32 v{vXA+kk}, {kk*32}, v{vXA}")
        g.tr_inrow(t1, t0, t2)
        a(f"v_xor_b32 v{t1}, s{sT0}, v{t1}")
        a(f"v_lshrrev_b32 v{t2}, 5, v{vL}")
        for (ra, rb, rc, ps) in ((vWa, vWb, vWc, 1024),) + (((vKa, vKb, vKc, 2048),) if atype else ()):
            sh = 10 if ps == 1024 else 11
            a(f"v_lshl_add_u32 v{t0}, v{t2}, {sh}, v{t1}")
            a(f"s_lshl_b32 s{sT1}, s{sC}, {sh+2}\nv_add_u32 v{ra}, s{sT1}, v{t0}\nv_xor_b32 v{rb}, {4*ps}, v{ra}")
            a(f"s_lshl_b32 s{sT1}, s{sR}, {sh+1}\nv_add_u32 v{rc}, s{sT1}, v{t0}")
        if atype:
            a(f"v_and_b32 v{vHa}, 16, v{vL}\nv_lshlrev_b32 v{vHa}, 1, v{vHa}\nv_and_b32 v{t0}, 3, v{vL}\nv_lshl_add_u32 v{vHa}, v{t0}, 3, v{vHa}")
            a(f"v_bfe_u32 v{t0}, v{vL}, 2, 2\nv_lshl_add_u32 v{vHa}, v{t0}, 6, v{vHa}\nv_lshl_add_u32 v{vHa}, v{t2}, 9, v{vHa}")
            a(f"v_add_u32 v{vHc}, s{sW1K}, v{vHa}\ns_lshl_b32 s{sT1}, s{sC}, 11\nv_add_u32 v{vHa}, s{sT1}, v{vHa}")
        a(f"v_and_b32 v{t0}, 31, v{vL}\nv_cmp_eq_u32 vcc, 0, v{t0}\nv_cmp_eq_u32 s[{sT0}:{sT0+1}], 20, v{t0}\ns_or_b64 vcc, vcc, s[{sT0}:{sT0+1}]")
        a(f"v_mov_b32 v{t1}, 0x3f803f80\nv_cndmask_b32 v{vSEL}, 0, v{t1}, vcc")
        for k in range(1, 4): a(f"v_mov_b32 v{vSEL+k}, v{vSEL}")
        a(f"v_lshlrev_b32 v{vCSr}, 4, v{t0}\ns_lshl_b32 s{sT0}, s{sC}, 9\ns_add_u32 s{sT0}, s{sT0}, {SC_CS}\nv_add_u32 v{vCSr}, s{sT0}, v{vCSr}")
        a(f"s_lshl_b32 s{sT0}, s{sR}, 2\nv_add_u32 v{vCSa}, s{sT0}, v{vCSr}")
        a(f"v_mov_b32 v{vS}, 0\nv_mov_b32 v{vQ}, 0\nv_mov_b32 v{t0}, {SC_CNT}\nds_write_b64 v{t0}, v[{vS}:{vQ}]\ns_waitcnt lgkmcnt(0)")
    def stats_ops(g, regs):
        ops = []
        for k, r in enumerate(regs):
            lo, hi = vT + 2*(k & 3), vT + 2*(k & 3) + 1
            ops += [f"v_lshlrev_b32 v{lo}, 16, v{r}", f"v_and_b32 v{hi}, 0xffff0000, v{r}",
                    f"v_add_f32 v{vS}, v{vS}, v{lo}", f"v_fmac_f32 v{vQ}, v{lo}, v{lo}",
                    f"v_add_f32 v{vS}, v{vS}, v{hi}", f"v_fmac_f32 v{vQ}, v{hi}, v{hi}"]
        return ops
    def cs_write(g, p, acc, tileidx):
        p(f"s_mov_b32 exec_hi, 0")
        p.lds(f"ds_write_b32 v{vCSa}, v{acc} offset:{int(tileidx*1024)}", "csw")
        p(f"s_mov_b32 exec_hi, -1")
    def i0(g, p, al, queue, atype):
        nt = 2 if atype else 1
        ra, rb, rc, ps = (vKa, vKb, vKc, 2048) if atype else (vWa, vWb, vWc, 1024)
        WU = lambda kc: ("KV", kc) if atype else ("W", 0, kc)
        FR = lambda kk, t: (vF, ACC[2])[t] + 4*kk
        def rdx(kc):
            for kk in range(4): p.rd128(vXF + 16*kc + 4*kk, vXA + kk, al.base(("X", kc)), ("x", kc, kk))
        def rdw(kc, kk, t):
            for n in range(2):
                p.tr(FR(kk, t) + 2*n, ra if kk < 2 else rb, al.base(WU(kc)) + (kk & 1)*2*ps + n*512 + t*1024, ("w", kc, kk, t))
        def rdc(kc, t):
            for n in range(2): p.tr(vT + 8 + 4*t + 2*n, rc, al.base(WU(kc)) + n*512 + t*1024, ("c", kc, t))
        def land(kc):
            p.wait_vm(("X", kc)); p.wait_vm(WU(kc)); p("s_barrier"); g.stamp(p, 1 + kc)
        land(0); rdx(0)
        for kk in range(4):
            for t in range(nt): rdw(0, kk, t)
        for t in range(nt): rdc(0, t)
        for u in g.plan(al, queue, PRO2): g.issue(p, al, u)
        for kc in range(8):
            if kc < 7: land(kc + 1); rdx(kc + 1)
            if 1 <= kc < 7: al.rel(("X", kc-1)); al.rel(WU(kc-1))
            newu = g.plan(al, queue, LIM_A if atype else LIM_H)
            if g.fused and kc == 4: g.nonce_load(p)
            st = Rec()
            st.wait_lg(("x", kc, 1))
            for o in g.stats_ops(range(vXF + 16*kc, vXF + 16*kc + 8)): st(o)
            fl = Fill([g.dmas(al, newu), st.ops], 4*nt + nt)
            for kk in range(4):
                ks = 4*kc + kk
                for t in range(nt):
                    p.wait_lg(("x", kc, kk)); p.wait_lg(("w", kc, kk, t))
                    x = vXF + 4*ks; c = 0 if ks == 0 else ACC[t]
                    p(mfma32(ACC[t], x, FR(kk, t), c) if atype else mfma32(ACC[t], FR(kk, t), x, c))
                    if kc < 7: rdw(kc + 1, kk, t)
                    fl.step(p)
                if kk == 1:
                    for t in range(nt):
                        p.wait_lg(("c", kc, t))
                        cs = (vCS0, vCS1)[t]
                        p(mfma16(cs, vSEL, vT + 8 + 4*t, 0 if kc == 0 else cs))
                        if kc < 7: rdc(kc + 1, t)
                        fl.step(p)
            fl.drain(p)
            if g.fused and kc == PFK: g.l2pf(p)
        t0 = vT
        p(f"v_and_b32 v{t0}, 31, v{vL}\nv_lshlrev_b32 v{t0}, 5, v{t0}\ns_lshl_b32 s{sT0}, s{sR}, 10\ns_add_u32 s{sT0}, s{sT0}, {SC_STAT}\nv_add_u32 v{t0}, s{sT0}, v{t0}")
        p(f"v_lshrrev_b32 v{t0+1}, 5, v{vL}\nv_lshl_add_u32 v{t0+1}, v{t0+1}, 3, v{t0}\ns_lshl_b32 s{sT0}, s{sC}, 4\nv_add_u32 v{t0+1}, s{sT0}, v{t0+1}")
        p.lds(f"ds_write_b64 v{t0+1}, v[{vS}:{vQ}]", "stw")
        for t in range(nt): g.cs_write(p, (vCS0, vCS1)[t], t)
        g.stat_addr = t0
    def stats_fin(g, p, atype):
        t = vT + 2
        p.lds(f"ds_read_b128 {vr(t)}, v{vT}", "st"); p.lds(f"ds_read_b128 {vr(t+4)}, v{vT} offset:16", "st")
        p.wait_lg0()
        p(f"v_add_f32 v{t}, v{t}, v{t+2}\nv_add_f32 v{t+4}, v{t+4}, v{t+6}\nv_add_f32 v{t+1}, v{t+1}, v{t+3}\nv_add_f32 v{t+5}, v{t+5}, v{t+7}")
        p(f"v_add_f32 v{t}, v{t}, v{t+4}\nv_add_f32 v{t+1}, v{t+1}, v{t+5}")
        p(f"v_mul_f32 v{t}, {f2u(-1/512)}, v{t}")
        p(f"v_mul_f32 v{t+1}, {f2u(1/512)}, v{t+1}\nv_fma_f32 v{t+1}, -v{t}, v{t}, v{t+1}")
        p(f"v_max_f32 v{t+1}, 0, v{t+1}\nv_add_f32 v{t+1}, {f2u(1e-5)}, v{t+1}")
        p(f"v_sqrt_f32 v{vIRS}, v{t+1}\nv_rcp_f32 v{vRS}, v{vIRS}")
        p(f"v_mul_f32 v{vRL}, {f2u(LOG2E)}, v{vRS}\nv_mul_f32 v{vC0}, {f2u(GC0)}, v{vRS}\nv_mul_f32 v{vC1}, v{vRS}, v{vRS}")
        p(f"v_mul_f32 v{vC1}, v{vC1}, v{vRS}\nv_mul_f32 v{vC1}, {f2u(GC1)}, v{vC1}")
        p(f"v_cvt_pk_bf16_f32 v{t+2}, v{t}, v{vIRS}")
        p(f"v_lshlrev_b32 v{t+3}, 16, v{t+2}\nv_and_b32 v{t+4}, 0xffff0000, v{t+2}")
        p(f"v_sub_f32 v{t+5}, v{t}, v{t+3}\nv_sub_f32 v{t+6}, v{vIRS}, v{t+4}")
        p(f"v_cvt_pk_bf16_f32 v{t+5}, v{t+3}, v{t+5}\nv_cvt_pk_bf16_f32 v{t+6}, v{t+6}, 0")
        p(f"v_cmp_gt_u32 vcc, 32, v{vL}")
        p(f"v_cndmask_b32 v{vXE}, 0, v{t+5}, vcc\nv_cndmask_b32 v{vXE+1}, 0, v{t+2}, vcc\nv_cndmask_b32 v{vXE+2}, 0, v{t+6}, vcc\nv_mov_b32 v{vXE+3}, 0")
        if atype:
            p(f"v_and_b32 v{t}, 31, v{vL}\nv_lshlrev_b32 v{t}, 2, v{t}\ns_lshl_b32 s{sT0}, s{sR}, 7\ns_add_u32 s{sT0}, s{sT0}, {SC_RS}\nv_add_u32 v{t}, s{sT0}, v{t}")
            p.lds(f"ds_write_b32 v{t}, v{vRL}", "rsw")
    def ext(g, p, acc, csoff, bias, transposed, two=False):
        t = vT
        p.lds(f"ds_read_b128 {vr(t)}, v{vCSr} offset:{csoff}", "cs")
        if two:
            p(f"v_xor_b32 v{t+8}, 512, v{vCSr}")
            p.lds(f"ds_read_b128 {vr(t+8)}, v{t+8} offset:{csoff}", "cs")
        p.gap(6)
        p.wait_lg("cs")
        if two:
            for k in range(4): p(f"v_add_f32 v{t+k}, v{t+k}, v{t+8+k}")
        p(f"v_add_f32 v{t}, v{t}, v{t+1}\nv_add_f32 v{t+2}, v{t+2}, v{t+3}\nv_add_f32 v{t}, v{t}, v{t+2}")
        p(f"v_cvt_pk_bf16_f32 v{t+4}, v{t}, v{t}\nv_lshlrev_b32 v{t+1}, 16, v{t+4}\nv_sub_f32 v{t}, v{t}, v{t+1}")
        if bias is not None:
            p(f"v_lshlrev_b32 v{t+1}, 16, v{bias}\nv_cvt_pk_bf16_f32 v{t+5}, v{t}, v{t+1}\nv_mov_b32 v{t+6}, v{bias}")
        else:
            p(f"v_cvt_pk_bf16_f32 v{t+5}, v{t}, 0\nv_mov_b32 v{t+6}, 0")
        p(f"v_mov_b32 v{t+7}, 0")
        p.gap(2)
        p(mfma32(acc, t+4, vXE, acc) if transposed else mfma32(acc, vXE, t+4, acc))
        p.gap(10)
    def store_frag(g, p, src, soff, tag="hst"):
        p.begin()
        p(f"s_add_u32 s{sT2}, s{sHF}, {soff}")
        p.vmem(f"buffer_store_dwordx4 {vr(src)}, v{vL16}, {srd(SWS)}, s{sT2} offen{g.sc}", tag)
        p.end()
    def diag(g, p, a0, n, chain, dst, done):
        ch = [chain(a0 + e, vT + 8 + (e & 7), e) for e in range(n)]; L = len(ch[0])
        for d in range(n + L):
            e = d - L
            if e >= 0 and e & 1:
                p(f"v_cvt_pk_bf16_f32 v{dst + (e >> 1)}, v{a0+e-1}, v{a0+e}")
                if e & 7 == 7: done(e >> 3)
            for e in range(max(0, d - L + 1), min(n, d + 1)):
                o = ch[e][d - e]
                if callable(o): o(p)
                else: p(o)
                if "exp" in str(o) or "rcp" in str(o): p.gap(1)
    def gelu_chain(g, x, y, e):
        return [f"v_mul_f32 v{y}, v{x}, v{x}", f"v_fma_f32 v{y}, v{y}, v{vC1}, v{vC0}", f"v_mul_f32 v{y}, v{y}, v{x}", f"v_exp_f32 v{y}, v{y}",
                f"v_fma_f32 v{y}, v{y}, v{vIRS}, v{vIRS}", f"v_rcp_f32 v{y}, v{y}", f"v_mul_f32 v{x}, v{y}, v{x}"]
    def phi_chain(g, x, y, sc):
        return [f"v_mul_f32 v{x}, v{x}, v{sc}", f"v_exp_f32 v{y}, v{x} clamp", f"v_max_f32 v{x}, 0, v{x}",
                f"v_fmaak_f32 v{x}, v{x}, v{vKa}, {f2u(1e-6)}", f"v_add_f32 v{x}, v{x}, v{y}"]
    def epi_gelu(g, acc, csoff, bias, soff, tag="hst"):
        p = Rec()
        g.ext(p, acc, csoff, bias, True)
        g.diag(p, acc, 16, g.gelu_chain, vT, lambda b: g.store_frag(p, vT + 4*b, soff + 1024*b, tag))
        return p.ops
    def epi_q(g, acc, csoff, soff):
        p = Rec()
        g.ext(p, acc, csoff, None, True)
        g.diag(p, acc, 16, lambda x, y, e: g.phi_chain(x, y, vRL), vT, lambda b: g.store_frag(p, vT + 4*b, soff + 1024*b))
        return p.ops
    def epi_kv(g):
        p = Rec()
        K, V = ACC[0], ACC[1]; t = vKc
        p(f"v_lshrrev_b32 v{t}, 5, v{vL}\nv_lshlrev_b32 v{t}, 4, v{t}")
        p.begin(); p(f"s_lshl_b32 s{sT2}, s{sR}, 7\ns_add_u32 s{sT2}, s{sT2}, {SC_RS}\nv_add_u32 v{t}, s{sT2}, v{t}"); p.end()
        def rdrl(b, q): p.lds(f"ds_read_b128 {vr(vG8+4*q)}, v{t} offset:{64*b + 32*q}", ("rl", b, q))
        rdrl(0, 0); rdrl(0, 1)
        p(f"v_mov_b32 v{vKa}, {f2u(LN2)}")
        g.ext(p, K, 0, None, False)
        g.ext(p, V, 1024, None, False)
        def chain(x, y, e):
            c = g.phi_chain(x, y, vG8 + (e & 7))
            c[0] += f"\nv_mul_f32 v{V+e}, v{V+e}, v{vG8 + (e & 7)}"
            if e & 7 == 0: c0 = c[0]; c[0] = lambda p: (p.wait_lg(("rl", e >> 3, 0)), p(c0))
            if e & 7 == 4: c0 = c[0]; c[0] = lambda p: (p.wait_lg(("rl", e >> 3, 1)), p(c0))
            if e == 3: c1 = c[1]; c[1] = lambda p: (rdrl(1, 0), p(c1))
            if e == 7: c1 = c[1]; c[1] = lambda p: (rdrl(1, 1), p(c1))
            return c
        g.diag(p, K, 16, chain, vT, lambda b: None)
        for k in range(8): p(f"v_cvt_pk_bf16_f32 v{V+k}, v{V+2*k}, v{V+2*k+1}")
        p(f"v_and_b32 v{t}, 16, v{vL}\nv_cmp_eq_u32 vcc, 0, v{t}\nv_lshrrev_b32 v{t}, 3, v{vL}\nv_lshlrev_b32 v{t}, 13, v{t}\nv_and_b32 v{V+8}, 112, v{vL16}\nv_add_u32 v{t}, v{t}, v{V+8}\nv_mov_b32 v{V+8}, 0x3f803f80")
        for k in range(8): p(f"v_cndmask_b32 v{vT+8+k}, v{V+8}, v{V+k}, vcc")
        for k in range(8): p(f"v_cndmask_b32 v{vG8+k}, v{V+k}, v{V+8}, vcc")
        p.gap(2)
        p(mfma32(K, vT, vT+8, 0)); p.gap(4); p(mfma32(V, vT, vG8, 0)); p.gap(4)
        p(mfma32(K, vT+4, vT+12, K)); p.gap(4); p(mfma32(V, vT+4, vG8+4, V)); p.gap(10)
        for q in range(4):
            if q: p(f"s_add_u32 s{sKVP}, s{sKVP}, 65536")
            p.vmem(f"buffer_store_dwordx4 {vr((K if q < 2 else V)+4*q)}, v{t}, {srd(SWS)}, s{sKVP} offen{g.sc}", "kvst")
        return p.ops
    def bt_setup(g, p):
        t0 = vBt1
        g.tr_inrow(vBt0, t0, None)
        p(f"v_lshrrev_b32 v{t0}, 5, v{vL}\nv_lshl_add_u32 v{vBt0}, v{t0}, 9, v{vBt0}\nv_add_u32 v{vBt0}, s{sW2K}, v{vBt0}\nv_xor_b32 v{vBt1}, 64, v{vBt0}")
        p.win.pop(vBt0, None); p.win.pop(vBt1, None)
    def rdB(g, p, u, dst):
        for t in range(2):
            for n in range(2): p.tr(dst + 4*t + 2*n, (vBt0, vBt1)[t], (u % 9)*16384 + n*1024, ("b", u))
    def preB(g, us):
        r = Rec()
        us = list(us)
        if not g.fused or not us: return []
        for u, v in zip(us + [None], [None] + us):
            if u is not None: r.begin(); r.wait_vm(("B", u)); g.rdB(r, u, BR(u)); r.end()
            if v is not None:
                r.begin(); r.wait_lg(("b", v)); g.issue_B(r, v + 9, v*16384); r.end()
        return r.ops
    def mm_pass(g, p, al, acc, kind, s, cstile, fillers, dw=1.0, queue=None):
        steps = [ks for ks in range(32) if kind != "Hh" or (ks & 3) < 2]
        def addr(ks, n):
            kc, kk = ks >> 2, ks & 3
            if kind == "Hh": return vHa, al.base(("Hh", kc >> 1)) + (kc & 1)*4096 + kk*1024 + n*256
            u = ("W", s, kc) if kind == "W" else ("Q", kc)
            return (vWa if kk < 2 else vWb), al.base(u) + (kk & 1)*2048 + n*512
        def caddr(q, n):
            if kind == "Hh": return vHc, al.base(("Hh", q)) + n*256
            u = ("W", s, q) if kind == "W" else ("Q", q)
            return vWc, al.base(u) + n*512
        N = len(steps); NC = N // 4
        def rd(i):
            for n in range(2):
                r, o = addr(steps[i], n); p.tr(vF + 4*(i & 3) + 2*n, r, o, ("w", i))
        def rdc(q):
            for n in range(2):
                r, o = caddr(q, n); p.tr(vCSF + 2*n, r, o, ("c", q))
        for i in range(4): rd(i)
        rdc(0)
        X = os.environ.get("XP", "") if s == 2 else ""
        if "f" in X: g.run(p, fillers[0]) if "F" in X else None; fillers = []
        if "d" in X: p.later = []
        fl = Fill(fillers + [window(g.dmas(al, p.later), 0, dw)], N + NC - 2); p.later = []
        fl.step(p)
        ramp = {0: 3, N*14//32: 2, N*24//32: 1, N*30//32: 0} if RAMP else {}
        for i in range(N):
            if i in ramp: p(f"s_setprio {ramp[i]}")
            p.wait_lg(("w", i))
            p(mfma32(acc, vF + 4*(i & 3), vXF + 4*steps[i], 0 if i == 0 else acc))
            if i + 4 < N: rd(i + 4)
            fl.step(p)
            if queue is not None and MID and i == 15:
                p("s_barrier")
                for q in range(4): al.rel(("W", s, q) if kind == "W" else ("Q", q))
                if os.environ.get("TRACE"): print("--mid")
                ops = g.dmas(al, g.plan(al, queue))
                if ops: fl.l.append([window(ops, 0.52, 0.8), 0])
            if i & 3 == 2 and "c" in X: fl.step(p)
            if i & 3 == 2 and "c" not in X:
                q = i >> 2
                p.wait_lg(("c", q))
                p(mfma16(vCS0, vSEL, vCSF, 0 if q == 0 else vCS0))
                if q + 1 < NC: rdc(q + 1)
                fl.step(p)
        fl.drain(p)
        g.cs_write(p, vCS0, cstile)
    def run(g, p, ops):
        for f in ops: f(p)
    def bar(g, paths, al, queue, waits, frees):
        for f in frees: al.rel(f)
        g.nbar += 1; sid = g.nbar
        newu = g.plan(al, queue)
        if os.environ.get("TRACE"): print("--bar", sid)
        def go(p, now=True):
            p.wait_lg0()
            g.stamp(p, 2*sid - 9)
            for w in waits: p.wait_vm(w)
            p("s_barrier")
            g.stamp(p, 2*sid - 8)
            p.later = list(newu)
            if now: g.flush(p, al)
        return go
    def flush(g, p, al):
        for u in getattr(p, "later", []): g.issue(p, al, u)
        p.later = []
    def role_H(g, after):
        a = g.a; p = Path(a); al = Alloc()
        a("L_roleH:"); g.nbar = 8; g.atype = False
        g.wdma_voff(vWd, 3584, vT, vT+1)
        a(f"s_mul_i32 s{sWO_}, s{sW}, {8*3584}\ns_sub_u32 s{sT}, s{sT}, 8\ns_mul_i32 s{sT0}, s{sT}, 384\ns_add_u32 s{sWO_}, s{sWO_}, s{sT0}")
        queue = []
        for kc in range(8): queue += [("X", kc), ("W", 0, kc)]
        for s in (1, 2): queue += [("W", s, kc) for kc in range(8)]
        if g.fused: queue += [("B", u) for u in range(9)]
        g.stamp(p, 39)
        g.tables(3584, range(2))
        for u in g.plan(al, queue, PRO_H): g.issue(p, al, u)
        g.stamp(p, 40)
        g.tables(3584, range(2, 8))
        g.early(p)
        for u in g.plan(al, queue, PRO_B-1): g.issue(p, al, u)
        a(f"v_and_b32 v{vT}, 31, v{vL}\nv_lshlrev_b32 v{vT}, 1, v{vT}\ns_lshl_b32 s{sT1}, s{sC}, 6\ns_add_u32 s{sT0}, s{sT0}, s{sT1}")
        a(f"s_mul_i32 s{sT0}, s{sT}, 384\ns_add_u32 s{sT0}, s{sT0}, s{sT1}")
        for s in range(3): p.vmem(f"buffer_load_ushort v{vB1+s}, v{vT}, {srd(SB1)}, s{sT0} offen offset:{128*s}", "b1")
        a(f"s_lshl_b32 s{sHF}, s{sI}, 2\ns_add_u32 s{sHF}, s{sHF}, s{sR}\ns_mul_i32 s{sHF}, s{sHF}, {HF_RT}")
        a(f"s_mul_i32 s{sT0}, s{sT}, {12*1024}\ns_add_u32 s{sHF}, s{sHF}, s{sT0}\ns_lshl_b32 s{sT0}, s{sC}, 11\ns_add_u32 s{sHF}, s{sHF}, s{sT0}")
        g.p1_setup2(False)
        g.stamp(p, 41)
        g.i0(p, al, queue, False)
        S = lambda s: [("W", s, kc) for kc in range(8)]
        g.nonce_pub(p)
        g.bar(None, al, queue, ["b1"] + S(1), [("X", 6), ("W", 0, 6), ("X", 7), ("W", 0, 7)])(p, False)
        g.stats_fin(p, False)
        g.mm_pass(p, al, ACC[1], "W", 1, 1, [g.epi_gelu(ACC[0], 0, vB1, 0)], 0.5 if MID else 1.0, queue)
        g.bar(None, al, queue, S(2), S(1))(p, False)
        if os.environ.get("LOOPT"):
            p.wait_lg0(); w0 = dict(p.win); p("s_mov_b32 s0, 0\nL_lt:\ns_memtime s[90:91]")
        g.bt_setup(p)
        g.mm_pass(p, al, ACC[0], "W", 2, 2, [g.epi_gelu(ACC[1], 1024, vB1+1, 4096, "hs1") + [lambda p: None]*FRONT, window(g.preB(HORD), PBW, 1.0)], 0.3, queue)
        if os.environ.get("LOOPT"):
            for r in list(p.win): p.la(r, w0.get(r, 0) << 16)
            p.wait_lg0(True)
            p(f"s_barrier\ns_memtime s[92:93]\ns_waitcnt lgkmcnt(0)\ns_sub_u32 s92, s92, s90\ns_add_u32 s92, s92, s96\ns_add_u32 m0, s0, 50\ns_nop 4\nv_writelane_b32 v{vSTASH}, s92, m0")
            p("s_add_u32 s0, s0, 1\ns_cmp_lt_u32 s0, 3\ns_cbranch_scc1 L_lt")
        g.bar(None, al, queue, ["hs1"], S(2))(p, False)
        ops = g.epi_gelu(ACC[0], 2048, vB1+2, 8192)
        g.put_flag(p, "h1", f"s_mov_b32 s{sT0}, s{sXO}", 16, (1, 0), wave=7)
        g.run(p, ops)
        g.kvreduce(p, 0)
        if H1E: g.h1_go(p)
        later = p.later; p.later = later[:NF1]; g.flush(p, al)
        g.flag_h(p); g.stamp(p, 18)
        g.kvreduce(p, 1)
        p.later = later[NF1:]; g.flush(p, al)
        if not H1E: g.h1_go(p)
        g.kvreduce(p, 2)
        after(p, al, queue, "H")
    def role_A(g, after):
        a = g.a; p = Path(a); al = Alloc()
        a("L_roleA:"); g.nbar = 8; g.atype = True
        g.wdma_voff(vWd, 3072, vT, vT+1)
        a(f"s_mul_i32 s{sWO_}, s{sW}, {8*3072}\ns_lshl_b32 s{sT0}, s{sT}, 7\ns_add_u32 s{sWO_}, s{sWO_}, s{sT0}")
        queue = []
        for kc in range(8): queue += [("X", kc), ("KV", kc)]
        queue += [("Q", kc) for kc in range(8)] + [("Hh", k) for k in range(4)]
        if g.fused: queue += [("B", u) for u in range(9)]
        g.stamp(p, 39)
        g.tables(3072, range(2))
        for u in g.plan(al, queue, PRO_A): g.issue(p, al, u)
        g.stamp(p, 40)
        g.tables(3072, range(2, 8))
        g.early(p)
        for u in g.plan(al, queue, PRO_B): g.issue(p, al, u)
        a(f"v_lshrrev_b32 v{vT}, 2, v{vL}\nv_mul_u32_u24 v{vHd}, 3584, v{vT}\nv_and_b32 v{vT}, 3, v{vL}\nv_lshl_add_u32 v{vHd}, v{vT}, 4, v{vHd}")
        a(f"s_lshl_b32 s{sT0}, s{sT}, 6\ns_add_u32 s{sT0}, s{sT0}, 3072\ns_mul_i32 s{sWO2}, s{sR}, {16*3584}\ns_add_u32 s{sWO2}, s{sWO2}, s{sT0}")
        a(f"v_and_b32 v{vT}, 31, v{vL}\nv_lshlrev_b32 v{vT}, 1, v{vT}")
        p.vmem(f"buffer_load_ushort v{vB1}, v{vT}, {srd(SB1)}, s{sT0} offen", "b1")
        a(f"s_lshl_b32 s{sHF}, s{sI}, 2\ns_add_u32 s{sHF}, s{sHF}, s{sR}\ns_lshl_b32 s{sKVP}, s{sHF}, 7\ns_mul_i32 s{sHF}, s{sHF}, {HF_RT}")
        a(f"s_lshl_b32 s{sT0}, s{sT}, 1\ns_add_u32 s{sT0}, s{sT0}, s{sC}\ns_lshl_b32 s{sT0}, s{sT0}, 18\ns_add_u32 s{sKVP}, s{sKVP}, s{sT0}\ns_add_u32 s{sKVP}, s{sKVP}, {WS_KVP}")
        a(f"s_lshl_b32 s{sT0}, s{sT}, 12\ns_add_u32 s{sHF}, s{sHF}, s{sT0}\ns_lshl_b32 s{sT0}, s{sC}, 11\ns_add_u32 s{sHF}, s{sHF}, s{sT0}")
        g.p1_setup2(True)
        g.stamp(p, 41)
        g.i0(p, al, queue, True)
        HH = [("Hh", k) for k in range(4)]; QQ = [("Q", kc) for kc in range(8)]
        g.nonce_pub(p)
        g.bar(None, al, queue, ["b1"] + QQ, [("X", 6), ("KV", 6), ("X", 7), ("KV", 7)])(p, False)
        g.stats_fin(p, True)
        g.mm_pass(p, al, ACC[2], "Q", 0, 2, [window(g.epi_kv(), 0, KVW)], 0.5 if MID else 1.0, queue)
        for u in QQ: al.rel(u)
        XB = 2*g.AP[1]; assert al.get("xch", 2, [XB]) is not None
        g.bar(None, al, queue, HH + ["kvst"], [])(p, False)
        g.flag_kv(p)
        g.bt_setup(p)
        g.mm_pass(p, al, ACC[0], "Hh", 0, 0, [g.epi_q(ACC[2], 2048, 112*1024), window(g.preB(range(NPA)), 0.4, 1.0)], 0.3)
        H = ACC[0]; t = 12
        p(f"v_add_u32 v{t}, s{sW2K}, v{vL16}\nv_add_u32 v{t+1}, {XB*SLOT}, v{t}\nv_xor_b32 v{t}, 8192, v{t+1}")
        p(f"s_cmp_eq_u32 s{sC}, 1\ns_cbranch_scc1 L_x1")
        a.fence()
        p(f"ds_write_b128 v{t}, {vr(H+8)}\nds_write_b128 v{t}, {vr(H+12)} offset:1024\ns_branch L_x2\nL_x1:")
        a.fence()
        p(f"ds_write_b128 v{t}, {vr(H)}\nds_write_b128 v{t}, {vr(H+4)} offset:1024\nL_x2:")
        p.lg.append("xw")
        g.bar(None, al, queue, [], HH)(p, False)
        p.lds(f"ds_read_b128 {vr(ACC[1])}, v{t+1}", "xr"); p.lds(f"ds_read_b128 {vr(ACC[1]+4)}, v{t+1} offset:1024", "xr")
        r = Rec(); g.ext(r, H, 0, vB1, True, True); g.run(p, r.ops)
        a.fence()
        p(f"s_cmp_eq_u32 s{sC}, 0\ns_cbranch_scc1 L_x3")
        for k in range(8): p(f"v_mov_b32 v{H+k}, v{H+8+k}")
        p("L_x3:")
        p.wait_lg("xr")
        for k in range(0, 8, 2): p(f"v_pk_add_f32 {vr(H+k,2)}, {vr(H+k,2)}, {vr(ACC[1]+k,2)}")
        p(f"s_lshl_b32 s{sT0}, s{sT}, 11\ns_sub_u32 s{sHF}, s{sHF}, s{sT0}\ns_lshl_b32 s{sT0}, s{sC}, 10\ns_sub_u32 s{sHF}, s{sHF}, s{sT0}")
        r = Rec(); g.diag(r, H, 8, g.gelu_chain, vT, lambda b: g.store_frag(r, vT, 96*1024)); g.run(p, r.ops)
        if H1E: g.h1_go(p)
        al.rel("xch"); p.later += g.plan(al, queue); g.flush(p, al)
        g.flag_h(p); g.stamp(p, 18)
        g.run(p, g.preB(range(NPA, 5)))
        if not H1E: g.h1_go(p)
        after(p, al, queue, "A")
    def early(g, p):
        if not g.fused: return
        g.p2_setup_dma()
        p(f"s_lshl_b32 s{sXO}, s{sI}, 4\ns_add_u32 s{sXO}, s{sXO}, s{sT}\ns_lshl_b32 s{sXO}, s{sXO}, 7\ns_add_u32 s{sXO}, s{sXO}, {WS_FLG + (0 if g.atype else 1024)}")
        p("s_mov_b32 s3, 1" if g.atype else f"s_mov_b32 s3, s{sC}")
        p(f"s_or_b32 s{sT0}, s2, s{sW}\ns_cmp_lg_u32 s{sT0}, 0\ns_cbranch_scc1 L_nn{int(g.atype)}")
        p(f"s_memrealtime s[{sT0}:{sT0+1}]\ns_waitcnt lgkmcnt(0)\ns_or_b32 s{sT0}, s{sT0}, 1")
        p(f"v_mov_b32 v{vT}, s{sT0}\nv_mov_b32 v{vT+1}, s{sT0+1}\nv_mov_b32 v{vT+2}, 0")
        p(f"buffer_store_dwordx2 v[{vT}:{vT+1}], v{vT+2}, {srd(SDBG)}, 0 offen sc1")
        p(f"L_nn{int(g.atype)}:")
    def nonce_load(g, p):
        p(f"v_mov_b32 v{vNON+2}, 0")
        p.vmem(f"buffer_load_dwordx2 v[{vNON}:{vNON+1}], v{vNON+2}, {srd(SDBG)}, 0 offen sc1", "non")
    def nonce_pub(g, p):
        if not g.fused: return
        L = f"L_np{int(g.atype)}"
        p.wait_vm("non")
        p(f"s_mov_b32 s{sT1}, {POLLMAX}")
        p(f"{L}:\nv_readfirstlane_b32 s{sT0}, v{vNON}\ns_cmp_lg_u32 s{sT0}, 0\ns_cbranch_scc1 {L}x")
        p(f"s_sleep 2\nbuffer_load_dwordx2 v[{vNON}:{vNON+1}], v{vNON+2}, {srd(SDBG)}, 0 offen sc1\ns_waitcnt vmcnt(0)")
        p(f"s_sub_u32 s{sT1}, s{sT1}, 1\ns_cmp_lg_u32 s{sT1}, 0\ns_cbranch_scc1 {L}\n{L}x:")
        p(f"v_readfirstlane_b32 s{sNON}, v{vNON}\nv_readfirstlane_b32 s{sNON+1}, v{vNON+1}")
    def put_flag(g, p, name, soff_code, t, repl, wave=None, cnt=None):
        if wave is not None: p(f"s_cmp_lg_u32 s{sW}, {wave}")
        else:
            p(f"v_mov_b32 v{t}, {SC_CNT + 4*cnt[0]}\nv_mov_b32 v{t+1}, 1\ns_mov_b64 exec, 1\nds_add_rtn_u32 v{t+1}, v{t}, v{t+1}\ns_mov_b64 exec, -1")
            lg = list(p.lg); p.wait_lg0(True)
            if name == "r": p.lg = lg
            p(f"v_readfirstlane_b32 s{sT0}, v{t+1}\ns_cmp_lg_u32 s{sT0}, {cnt[1]-1}")
        p(f"s_cbranch_scc1 L_nf{name}")
        p(soff_code)
        p(f"v_mov_b32 v{t}, s{sNON}\nv_mov_b32 v{t+1}, s{sNON+1}\nv_lshlrev_b32 v{t+2}, {repl[1]}, v{vL}\ns_mov_b64 exec, {(1 << repl[0]) - 1:#x}")
        p(f"buffer_store_dwordx2 v[{t}:{t+1}], v{t+2}, {srd(SWS)}, s{sT0} offen sc1")
        p(f"s_mov_b64 exec, -1\nL_nf{name}:\ns_nop 3")
    def flag_h(g, p):
        p.wait_vm("hst")
        g.put_flag(p, "h2" + "HA"[g.atype], f"s_add_u32 s{sT0}, s{sXO}, 32768", 20, (1, 0), cnt=(0, 8))
    def flag_kv(g, p):
        if not g.fused: return
        g.put_flag(p, "kv", f"s_lshl_b32 s{sT0}, s{sT}, 8\ns_add_u32 s{sT0}, s{sT0}, s{sI}\ns_lshl_b32 s{sT0}, s{sT0}, 3\ns_add_u32 s{sT0}, s{sT0}, {WS_FLG + 65536}", 12, (16, 7), wave=0)
    def l2pf(g, p):
        t, t2 = (vB1+1, vB1+2) if g.atype else (vKa, vKb)
        p(f"s_lshr_b32 s{sT0}, s2, 3\ns_lshl_b32 s{sT0}, s{sT0}, 3\ns_add_u32 s{sT0}, s{sT0}, s{sW}\ns_mul_i32 s{sT1}, s{sT0}, 7168\ns_lshl_b32 s{sT0}, s{sT0}, 11")
        p(f"v_min_u32 v{t}, 55, v{vL}\nv_lshlrev_b32 v{t}, 7, v{t}")
        p.vmem(f"buffer_load_dword v{t}, v{t}, {srd(SW2)}, s{sT1} offen", "pf")
        p(f"v_and_b32 v{t2}, 15, v{vL}\nv_lshlrev_b32 v{t2}, 7, v{t2}")
        p.vmem(f"buffer_load_dword v{t2}, v{t2}, {srd(SWO)}, s{sT0} offen", "pf")
    def poll_ld(g, name):
        vd, va, sreg = g.PL[name]
        return f"buffer_load_dwordx2 v[{vd}:{vd+1}], v{va}, {srd(SWS)}, s{sreg} offen sc1"
    def poll_go(g, p, name): p.vmem(g.poll_ld(name), ("opt" if name == "r" else "pl", name))
    def poll(g, p, name):
        L = f"L_pl{name}"; vd = g.PL[name][0]
        p.wait_vm(("opt" if name == "r" else "pl", name))
        p(f"s_mov_b32 s{sT1}, {POLLMAX}")
        p(f"{L}:\nv_cmp_ne_u64 vcc, s[{sNON}:{sNON+1}], v[{vd}:{vd+1}]\ns_nop 1\ns_cmp_eq_u64 vcc, 0\ns_cbranch_scc1 {L}x")
        p(f"s_sleep {SLP}\n{g.poll_ld(name)}\ns_waitcnt vmcnt(0)")
        p(f"s_sub_u32 s{sT1}, s{sT1}, 1\ns_cmp_lg_u32 s{sT1}, 0\ns_cbranch_scc1 {L}\n{L}x:")
    PL = {"h1": (2, 4, 64), "h2": (12, 4, sWO_), "a": (2, 4, sWO2), "k": (12, 5, sHF), "r": (14, 5, 65)}
    def h1_go(g, p):
        if not g.fused: return
        p(f"v_mov_b32 v4, 0\ns_lshr_b32 s{sWO2}, s{sRB}, 1\ns_lshl_b32 s{sWO2}, s{sWO2}, 4\ns_add_u32 s{sWO2}, s{sWO2}, s{sW}\ns_lshl_b32 s{sWO2}, s{sWO2}, 7")
        p(f"s_add_u32 s64, s{sWO2}, {WS_FLG + 1024}\ns_add_u32 s{sWO2}, s{sWO2}, {WS_FLG + 32768}\ns_add_u32 s{sWO_}, s{sWO2}, 1024")
        g.poll_go(p, "h1")
    def p2_poll_setup(g, p):
        p(f"v_and_b32 v5, 15, v{vL}\nv_lshlrev_b32 v5, 3, v5")
        p(f"s_lshr_b32 s{sHF}, s{sRB}, 2\ns_lshl_b32 s{sHF}, s{sHF}, 3\ns_add_u32 s{sHF}, s{sHF}, s{sW}\ns_lshl_b32 s{sHF}, s{sHF}, 7\ns_add_u32 s{sHF}, s{sHF}, {WS_FLG + 98304}")
    def after_fused(g, p, al, queue, tag):
        assert not queue and not p.later, queue
        m = [x for x in p.vm if x[0] != "opt"]
        assert len(m) - 1 - m.index(("pl", "h1")) >= 8*H1E and p.win[vBt0] == 1 and p.win[vBt1] == 1, p.vm
        p.wait_lg0()
        if PRIO: p("s_setprio 3")
        if tag == "A": p("s_branch L_p2")
    def phase1(g, after):
        a = g.a
        g.p1_setup()
        a(f"s_cmp_ge_u32 s{sT}, 8\ns_cbranch_scc1 L_roleH")
        g.role_A(after); g.role_H(after)
    def kvreduce(g, p, st):
        p.wait_lg0() if p.pend else None
        if st == 0: p(f"v_and_b32 v5, 15, v{vL}\nv_lshlrev_b32 v5, 3, v5")
        p(f"s_cmp_lg_u32 s3, 0\ns_cbranch_scc1 L_nored{st}")
        R = 192; t = 16; RK = lambda k: R + 4*k
        if st == 0:
            p(f"s_lshl_b32 s{sKVP}, s{sI}, 2\ns_add_u32 s{sKVP}, s{sKVP}, s{sR}\ns_lshl_b32 s{sT0}, s{sT}, 6\ns_add_u32 s{sKVP}, s{sKVP}, s{sT0}")
            p(f"s_lshr_b32 s65, s{sKVP}, 2\ns_lshl_b32 s65, s65, 7\ns_add_u32 s65, s65, {WS_FLG + 65536}")
            g.poll_go(p, "r")
        if st == 1:
            g.stamp(p, 30); g.poll(p, "r"); g.stamp(p, 31)
            p(f"s_lshl_b32 s{sT0}, s{sKVP}, 13\ns_add_u32 s{sT0}, s{sT0}, {WS_KVP}\ns_add_u32 s{sT1}, s{sT0}, 4096")
            for k in range(8):
                p.vmem(f"buffer_load_dwordx4 {vr(RK(k))}, v{vL16}, {srd(SWS)}, s{sT0 + (k>>2)} offen offset:{(k&3)*1024}{g.sc}", ("opt", "kr", k))
        if st == 2:
            p(f"s_lshr_b32 s{sT1}, s{sI}, 1\ns_xor_b32 s{sT1}, s{sT1}, s{sR}\ns_bitcmp0_b32 s{sT1}, 1\ns_cselect_b32 s{sT1}, {f2u(LN2)}, 1.0")
            p(f"s_and_b32 s{sT0}, s{sKVP}, 0x1f0\ns_lshl_b32 s{sT0}, s{sT0}, 6\ns_and_b32 s{sT2}, s{sKVP}, 7\ns_lshl_b32 s{sT2}, s{sT2}, 7\ns_add_u32 s{sT0}, s{sT0}, s{sT2}")
            p(f"s_and_b32 s{sT2}, s{sKVP}, 8\ns_add_u32 s{sT0}, s{sT0}, s{sT2}\ns_add_u32 s{sT0}, s{sT0}, {WS_KVF}")
            p.wait_vm(("opt", "kr", 7))
            for k in range(1, 8):
                for e in range(4): p(f"v_add_f32 v{R+e}, v{R+e}, v{RK(k)+e}")
            for e in range(4): p(f"v_add_f32_dpp v{R+e}, v{R+e}, v{R+e} row_ror:8 row_mask:0xf bank_mask:0xf")
            for sw in ("16", "32"):
                for e in range(4): p(f"v_mov_b32 v{R+4+e}, v{R+e}")
                for e in range(4): p(f"v_permlane{sw}_swap_b32 v{R+4+e}, v{R+e}")
                for e in range(4): p(f"v_add_f32 v{R+e}, v{R+e}, v{R+4+e}")
            for e in range(4): p(f"v_mul_f32 v{R+e}, s{sT1}, v{R+e}")
            p(f"v_cvt_pk_bf16_f32 v{R}, v{R}, v{R+1}\nv_cvt_pk_bf16_f32 v{R+1}, v{R+2}, v{R+3}\ns_mov_b64 exec, 0xff")
            p.vmem(f"buffer_store_dwordx2 {vr(R,2)}, v{vL16}, {srd(SWS)}, s{sT0} offen{g.sc}", ("opt", "kvf"))
            p("s_mov_b64 exec, -1"); g.stamp(p, 33)
        if st == 3:
            p.wait_vm(("opt", "kvf"))
            g.put_flag(p, "r", f"s_lshr_b32 s{sT0}, s{sKVP}, 2\ns_lshl_b32 s{sT0}, s{sT0}, 3\ns_add_u32 s{sT0}, s{sT0}, {WS_FLG + 98304}", t, (8, 10), cnt=(1, 4))
            g.stamp(p, 32)
        if p.pend:
            lg = list(p.lg); p.wait_lg0(); p.lg = lg
        p(f"L_nored{st}:\ns_nop 3")
    def p2_setup_dma(g):
        a = g.a
        g.wdma_voff(vBd0, 1024, vT, vT+1)
        a(f"v_add_u32 v{vBd1}, 7168, v{vBd0}")
        a(f"s_lshl_b32 s{sB0}, s{sN}, 7")
    def issue_B(g, p, u, b):
        if u < 12:   mul, add, sr = 12*16384, u*16384, SW2
        elif u < 14: mul, add, sr = 2*16384, (96 + u - 12)*16384, SW2
        else:        mul, add, sr = 4*16384, (u - 14)*16384, SWO
        p(f"s_add_u32 m0, s{sW2K}, {b}\ns_mul_i32 s{sT0}, s{sW}, {mul}\ns_add_u32 s{sT0}, s{sT0}, s{sB0}\ns_add_u32 s{sT0}, s{sT0}, {add}")
        p.vmem(f"buffer_load_dwordx4 v{vBd0}, {srd(sr)}, s{sT0} offen lds", ("B", u))
        p.vmem(f"buffer_load_dwordx4 v{vBd1}, {srd(sr)}, s{sT0} offen offset:1024 lds", ("B", u))
    def phase2(g, p, bpos, pending):
        a = g.a
        AC = lambda t, m: 192 + 16*(2*t + m)
        BJ = lambda k: 104 + 8*(k & 1)
        ND = 8
        AR = lambda u, m: 40 + 8*(u % ND) + 4*m
        KVF = 24
        vA1, vO = 8, 11
        vXR, vB2R = 12, 16
        t0, t1 = 20, 21
        if g.stamps: p(f"v_mov_b32 v23, v{vSTASH}"); p.stash = 23
        g.stamp(p, 19)
        for u, b in pending:
            bpos[u] = b; g.issue_B(p, u, b)
        if g.fused: g.p2_poll_setup(p)
        p(f"v_add_u32 v{vA1}, {HF_RT}, v{vL16}")
        p(f"s_mul_i32 s{sA0}, s{sRB}, {2*HF_RT}")
        def loadA(u):
            if u < 12:   mul, add = 12*1024, u*1024
            elif u < 14: mul, add = 2*1024, (96 + u - 12)*1024
            else:        mul, add = 4*1024, (112 + u - 14)*1024
            p(f"s_mul_i32 s{sT0}, s{sW}, {mul}\ns_add_u32 s{sT0}, s{sT0}, s{sA0}\ns_add_u32 s{sT0}, s{sT0}, {add}")
            p.vmem(f"buffer_load_dwordx4 {vr(AR(u,0))}, v{vL16}, {srd(SWS)}, s{sT0} offen{ASC}", ("A", u))
            p.vmem(f"buffer_load_dwordx4 {vr(AR(u,1))}, v{vA1}, {srd(SWS)}, s{sT0} offen{ASC}", ("A", u))
        rdB = lambda u, dst: g.rdB(p, u, dst)
        g.poll(p, "h1"); g.stamp(p, 17)
        for k in range(NA1): loadA(k)
        g.poll_go(p, "h2")
        p.wait_vm("Bx")
        for u in range(5, 9): rdB(u, BR(u))
        g.kvreduce(p, 3)
        if PRIO: p(f"s_setprio {0 if PRIO == 1 else 2}")
        for k in range(NA1, ND): loadA(k)
        p.wait_lg0()
        if not BLATE:
            for u in range(5, 9): g.issue_B(p, u + 9, u*16384)
        if PRIO == 2: p("s_setprio 1")
        g.stamp(p, 20)
        def loadE():
            p(f"v_lshrrev_b32 v{t0}, 3, v{vL}\nv_lshlrev_b32 v{vO}, 10, v{t0}\nv_and_b32 v{t0}, 7, v{vL}\nv_lshlrev_b32 v{t0}, 4, v{t0}\nv_add_u32 v{vO}, v{vO}, v{t0}")
            p(f"s_lshl_b32 s{sT2}, s{sRB}, 16\ns_lshl_b32 s{sT1}, s{sW}, 13\ns_add_u32 s{sT2}, s{sT2}, s{sT1}\ns_add_u32 s{sT2}, s{sT2}, s{sB0}")
            p.vmem(f"buffer_load_dwordx4 {vr(vXR)}, v{vO}, {srd(SX)}, s{sT2} offen", "xr")
            p.vmem(f"buffer_load_dwordx4 {vr(vB2R)}, v{t0}, {srd(SB2)}, s{sB0} offen", "xr")
        vb = 22
        def pw(q):
            for qd in range(4): p.lds(f"ds_write_b128 v{KVF + 4*q + qd}, {vr(AC(q >> 1, q & 1) + 4*qd)}", "pw")
        def loadKV():
            p(f"s_lshl_b32 s{sT0}, s{sW}, 12\ns_add_u32 s{sT0}, s{sT0}, {WS_KVF}")
            for k in range(4): p.vmem(f"buffer_load_dwordx4 {vr(KVF+4*k)}, v{vL16}, {srd(SWS)}, s{sT0} offen offset:{k*1024}{g.sc}", "kvf")
        for u in range(18):
            if u == 8:
                p.wait_vm(("B", 9)); rdB(9, BJ(9))
            if 9 <= u < 17:
                p.wait_vm(("B", u+1)); rdB(u+1, BJ(u+1))
            if u == KU:
                if g.fused: g.poll(p, "k")
                loadKV(); loadE()
            p.wait_vm(("A", u))
            if u in (0, 4, 8, 12, 14, 17): g.stamp(p, {0:21, 4:22, 8:23, 12:24, 14:25, 17:26}[u])
            bf = BR(u) if u < 9 else BJ(u)
            oc = []
            if 13 <= u < 17:
                p.wait_vm("kvf"); p.wait_vm(("A", u+1))
                hd = u - 13
                for m in range(2):
                    D = 120 + 16*m
                    p(mfma32(D, KVF + 4*hd, AR(u+1, m), 0))
                    num, den = (D, D+8) if hd % 2 == 0 else (D+8, D)
                    o = [f"v_add_f32 v{den}, {f2u(1e-6)}, v{den}\nv_rcp_f32 v{den}, v{den}"]
                    o += [f"v_mul_f32 v{num+k}, v{num+k}, v{den}" for k in range(8)]
                    o += [f"v_cvt_pk_bf16_f32 v{AR(u+1,m)+k}, v{num+2*k}, v{num+2*k+1}" for k in range(4)]
                    oc += ["\n".join(o[:7]), "\n".join(o[7:])]
            if u == 12:
                oc = [f"v_and_b32 v{t0}, 15, v{vL}\nv_lshrrev_b32 v{t1}, 5, v{vL}\nv_xor_b32 v{t0}, v{t0}, v{t1}\nv_lshlrev_b32 v{vb}, 4, v{t0}",
                      f"v_and_b32 v{t0}, 7, v{vL}\nv_lshl_add_u32 v{vb}, v{t0}, 8, v{vb}\nv_bfe_u32 v{t0}, v{vL}, 3, 2\nv_lshl_add_u32 v{vb}, v{t0}, 14, v{vb}\nv_add_u32 v{vb}, s{sW2K}, v{vb}",
                      f"v_lshrrev_b32 v{t0}, 3, v{vL}\nv_and_b32 v{t1}, 7, v{vL}\nv_lshlrev_b32 v{t1}, 1, v{t1}\nv_xor_b32 v{t1}, v{t1}, v{t0}\n"
                      f"s_and_b32 s{sT0}, s{sW}, 1\ns_lshl_b32 s{sT0}, s{sT0}, 3\nv_xor_b32 v{t1}, s{sT0}, v{t1}\nv_lshlrev_b32 v{t1}, 4, v{t1}",
                      f"v_lshl_add_u32 v{t1}, v{t0}, 8, v{t1}\ns_lshl_b32 s{sT0}, s{sW}, 14\nv_add_u32 v{t1}, s{sT0}, v{t1}\nv_xor_b32 v{t0}, 16, v{t1}"]
            if u >= 9: p.wait_lg(("b", u))
            for q in range(4):
                t, m = q >> 1, q & 1
                p(mfma32(AC(t, m), bf + 4*t, AR(u, m), 0 if u == 0 else AC(t, m)))
                if oc: p(oc[q])
                if u == 17:
                    for qd in range(4): p(f"v_xor_b32 v{KVF + 4*q + qd}, {((8*t + 2*qd) << 4) | (m << 16)}, v{vb}")
                    if q: pw(q - 1)
            if g.fused:
                if u == H2U: g.poll(p, "h2"); [loadA(k + ND) for k in range(u)]
                if u == 4: g.poll(p, "a")
            if u + ND < 18 and (u >= H2U or not g.fused): loadA(u + ND)
            if g.fused:
                if u == H2U: g.poll_go(p, "a")
                if u == 8: g.poll_go(p, "k")
                if BLATE and u in BLATE: g.issue_B(p, 14 + BLATE.index(u), (5 + BLATE.index(u))*16384)
                if u == 5 and PRIO == 2: p("s_setprio 0")

        pw(3)
        p.wait_lg0(); g.stamp(p, 27); p("s_barrier"); g.stamp(p, 28)
        for s in range(8):
            p.lds(f"ds_read_b128 {vr(40 + 8*s)}, v{t1} offset:{s*2048}", ("pr", s))
            p.lds(f"ds_read_b128 {vr(44 + 8*s)}, v{t0} offset:{s*2048}", ("pr", s))
        p.wait_vm("xr")
        E = 104
        for k in range(4):
            p(f"v_lshlrev_b32 v{E+2*k}, 16, v{vXR+k}\nv_and_b32 v{E+2*k+1}, 0xffff0000, v{vXR+k}")
            p(f"v_lshlrev_b32 v{E+8+2*k}, 16, v{vB2R+k}\nv_and_b32 v{E+8+2*k+1}, 0xffff0000, v{vB2R+k}")
        for k in range(0, 8, 2): p(f"v_pk_add_f32 {vr(E+k,2)}, {vr(E+k,2)}, {vr(E+8+k,2)}")
        for s in range(8):
            p.wait_lg(("pr", s))
            for k in range(0, 8, 2): p(f"v_pk_add_f32 {vr(E+k,2)}, {vr(E+k,2)}, {vr(40+8*s+k,2)}")
        for k in range(4): p(f"v_cvt_pk_bf16_f32 v{E+8+k}, v{E+2*k}, v{E+2*k+1}")
        p.vmem(f"buffer_store_dwordx4 {vr(E+8)}, v{vO}, {srd(SOUT)}, s{sT2} offen{OSC}", "out")
        g.stamp_out(p, 0 if g.fused else 2)
        p("s_endpgm")
vBd0, vBd1 = 7, 0
HDR = open(f"cdna_kernels/{KN}.s.ref").read().split("; @launch")[0]
def kdesc(name):
    return f""".amdhsa_kernel {name}
  .amdhsa_next_free_vgpr 256
  .amdhsa_next_free_sgpr 102
  .amdhsa_accum_offset 256
  .amdhsa_group_segment_fixed_size 0
  .amdhsa_kernarg_size 88
  .amdhsa_user_sgpr_count 2
  .amdhsa_user_sgpr_kernarg_segment_ptr 1
  .amdhsa_system_sgpr_workgroup_id_x 1
.end_amdhsa_kernel
"""
def khead(name): return f".globl {name}\n.p2align 8\n.type {name},@function\n{name}:\n"
def build3():
    names = [KN + "_kernel", "kvr_kernel", "g2_kernel"]
    out = HDR
    out += f"; @launch kernel={names[0]} grid=(256,1,1) block=(512,1,1) lds=163840\n"
    out += f"; @launch kernel={names[1]} grid=(128,1,1) block=(64,1,1) lds=0\n"
    out += f"; @launch kernel={names[2]} grid=(256,1,1) block=(512,1,1) lds=163840\n"
    out += '.amdgcn_target "amdgcn-amd-amdhsa--gfx950"\n.text\n'
    g = Gen(); g.prologue(256)
    g.phase1(lambda p, al, q, tag: (g.stamp_out(p, 0), p("s_endpgm")))
    g.a("L_exit:\ns_endpgm")
    out += khead(names[0]) + g.a.finish()
    g = Gen(); g.prologue(128)
    g.a(f"s_and_b32 s{sI}, s2, 15\ns_lshr_b32 s{sT}, s2, 4")
    pp = Path(g.a); g.kvreduce(pp, sI, sT); g.stamp_out(pp, 1); g.a("L_exit:\ns_endpgm")
    out += khead(names[1]) + g.a.finish().replace("L_exit", "L_exit1")
    g = Gen(); g.prologue(256); g.p2_setup_dma()
    g.phase2(Path(g.a), {}, [(u, u*16384) for u in range(9)]); g.a("L_exit:\ns_endpgm")
    out += khead(names[2]) + g.a.finish().replace("L_exit", "L_exit2")
    out += '.section .rodata,"a"\n.p2align 6\n' + "".join(kdesc(n) + ".p2align 6\n" for n in names)
    return out
def build1():
    name = KN + "_kernel"
    out = HDR + "; @launch grid=(256,1,1) block=(512,1,1) lds=163840\n"
    out += '.amdgcn_target "amdgcn-amd-amdhsa--gfx950"\n.text\n'
    g = Gen(True); g.prologue(256)
    g.phase1(g.after_fused)
    g.a("L_p2:"); g.a.fence()
    p = Path(g.a); p.vm = [("pl", "h1")] + ["Bx"]*(8*H1E) + [("opt", "kvf")]; p.win = {vBt0: 1, vBt1: 1}
    g.phase2(p, {u: u*16384 for u in range(9)}, [])
    g.a("L_exit:\ns_endpgm")
    out += khead(name) + g.a.finish()
    out += '.section .rodata,"a"\n.p2align 6\n' + kdesc(name)
    return out
if __name__ == "__main__":
    mode = sys.argv[1] if len(sys.argv) > 1 else "3"
    dst = sys.argv[2] if len(sys.argv) > 2 else f"cdna_kernels/{KN}.s"
    open(dst, "w").write(build3() if mode == "3" else build1())
```
